```python
import torch

def _softmax(x, axis=-1):
    return torch.softmax(x, dim=axis)
def _gelu(x):
    return torch.nn.functional.gelu(x, approximate="tanh")
def _silu(x):
    return torch.nn.functional.silu(x)
def _sigmoid(x):
    return torch.sigmoid(x)
def _layernorm(x, axis=-1, eps=1e-5):
    m = x.mean(dim=axis, keepdim=True)
    v = x.var(dim=axis, keepdim=True, unbiased=False)
    return (x - m) / torch.sqrt(v + eps)
def _scatter_add(tgt, idx, src, axis=0):
    return tgt.clone().index_add_(axis, idx, src)
def _segment_sum(src, seg, n):
    out = torch.zeros((n,) + src.shape[1:], dtype=src.dtype)
    return out.index_add_(0, seg, src)
def _pad(x, pw):
    flat = tuple(v for pair in reversed(pw) for v in pair)
    return torch.nn.functional.pad(x, flat)

kernel_name = 'concat_heads__gqa_block_cached__gqa_block_cached__near_ridge'

def setup_inputs():

    _w = (lambda a: (lambda t: t.to(torch.bfloat16) if t.is_floating_point() else t)(torch.as_tensor(a)))
    def _A_setup():
        B, Sq, D = 8, 160, 640
        Hq, Hkv, Sk, Dh = 32, 32, 512, 128
        assert Hq % Hkv == 0, (Hq, Hkv)
        return {
            "x": _w((lambda *s: torch.randn(*s, dtype=torch.bfloat16) * 0.8)(B, Sq, D)),
            "k_cache": _w((lambda *s: torch.randn(*s, dtype=torch.bfloat16) * 0.8)(B, Hkv, Sk, Dh)),
            "v_cache": _w((lambda *s: torch.randn(*s, dtype=torch.bfloat16) * 0.05)(B, Hkv, Sk, Dh)),
            "wq": _w((lambda *s: torch.randn(*s, dtype=torch.bfloat16) * 0.8)(D, Hq * Dh) * (D ** -0.5)),
            "wo": _w((lambda *s: torch.randn(*s, dtype=torch.bfloat16) * 0.05)(Hq * Dh, D) * ((Hq * Dh) ** -0.5)),
        }
    _A_in = _A_setup()

    def _B_setup():
        B, Sq, D = 8, 160, 640
        Hq, Hkv, Sk, Dh = 32, 32, 512, 128
        assert Hq % Hkv == 0, (Hq, Hkv)
        return {
            "x": _w((lambda *s: torch.randn(*s, dtype=torch.bfloat16) * 0.8)(B, Sq, D)),
            "k_cache": _w((lambda *s: torch.randn(*s, dtype=torch.bfloat16) * 0.8)(B, Hkv, Sk, Dh)),
            "v_cache": _w((lambda *s: torch.randn(*s, dtype=torch.bfloat16) * 0.05)(B, Hkv, Sk, Dh)),
            "wq": _w((lambda *s: torch.randn(*s, dtype=torch.bfloat16) * 0.8)(D, Hq * Dh) * (D ** -0.5)),
            "wo": _w((lambda *s: torch.randn(*s, dtype=torch.bfloat16) * 0.05)(Hq * Dh, D) * ((Hq * Dh) ** -0.5)),
        }
    _B_in = _B_setup()

    return {
        "A_x": _A_in["x"],
        "A_k_cache": _A_in["k_cache"],
        "A_v_cache": _A_in["v_cache"],
        "A_wq": _A_in["wq"],
        "A_wo": _A_in["wo"],
        "B_x": _B_in["x"],
        "B_k_cache": _B_in["k_cache"],
        "B_v_cache": _B_in["v_cache"],
        "B_wq": _B_in["wq"],
        "B_wo": _B_in["wo"],
    }

def reference(A_x, A_k_cache, A_v_cache, A_wq, A_wo, B_x, B_k_cache, B_v_cache, B_wq, B_wo):
    def _A_ref(x, k_cache, v_cache, wq, wo):
        B, Sq, D = x.shape
        Hq, Dh = 32, 128
        Hkv = k_cache.shape[1]
        rep = Hq // Hkv
        q = (lambda x, *d: x.permute(*d))((x @ wq).reshape(B, Sq, Hq, Dh), 0, 2, 1, 3)
        k = (lambda x, n, axis: torch.repeat_interleave(x, n, dim=axis))(k_cache, rep, axis=1)
        v = (lambda x, n, axis: torch.repeat_interleave(x, n, dim=axis))(v_cache, rep, axis=1)
        scores = torch.einsum("bhqd,bhkd->bhqk", q, k) * (Dh ** -0.5)
        p = _softmax(scores, axis=-1)
        o = torch.einsum("bhqk,bhkd->bhqd", p, v)
        return (lambda x, *d: x.permute(*d))(o, 0, 2, 1, 3).reshape(B, Sq, Hq * Dh) @ wo

    def _B_ref(x, k_cache, v_cache, wq, wo):
        B, Sq, D = x.shape
        Hq, Dh = 32, 128
        Hkv = k_cache.shape[1]
        rep = Hq // Hkv
        q = (lambda x, *d: x.permute(*d))((x @ wq).reshape(B, Sq, Hq, Dh), 0, 2, 1, 3)
        k = (lambda x, n, axis: torch.repeat_interleave(x, n, dim=axis))(k_cache, rep, axis=1)
        v = (lambda x, n, axis: torch.repeat_interleave(x, n, dim=axis))(v_cache, rep, axis=1)
        scores = torch.einsum("bhqd,bhkd->bhqk", q, k) * (Dh ** -0.5)
        p = _softmax(scores, axis=-1)
        o = torch.einsum("bhqk,bhkd->bhqd", p, v)
        return (lambda x, *d: x.permute(*d))(o, 0, 2, 1, 3).reshape(B, Sq, Hq * Dh) @ wo

    a = _A_ref(A_x, A_k_cache, A_v_cache, A_wq, A_wo)
    b = _B_ref(B_x, B_k_cache, B_v_cache, B_wq, B_wo)
    return torch.concatenate([a, b], axis=-1)
```

```python
import re, sys
from collections import defaultdict

def R(kind, lo, n=1):
    return [(kind, lo + i) for i in range(n)]
def V(lo, n=1): return R('v', lo, n)
def A(lo, n=1): return R('a', lo, n)
def S(lo, n=1): return R('s', lo, n)
def T(name): return [('t', name)]

def rs(kind, lo, n=1):
    return f"{kind}{lo}" if n == 1 else f"{kind}[{lo}:{lo+n-1}]"

class Op:
    __slots__ = ("text", "kind", "defs", "uses", "cuses", "idx", "preds", "succs", "npred", "ready", "dl", "t", "soft", "grp", "nowait", "pos", "cost")
    def __init__(s, text, kind, defs=(), uses=(), cuses=(), soft=0, grp=None):
        s.text = text; s.kind = kind; s.defs = list(defs); s.uses = list(uses); s.cuses = list(cuses)
        s.preds = []; s.succs = []; s.soft = soft; s.grp = grp

COST = dict(mfma=8, valu=4, trans=8, dsr=4, dsw=4, vld=4, vst=4, dma=4, salu=4, bar=4, tok=0, perm=4)
CHAIN = dict(mfma='M', dsr='D', dsw='D', vld='G', vst='G', dma='G', bar='B')
DS_LAT = 140
VM_LAT = 1200

class Prog:
    def __init__(s):
        s.ops = []
    def add(s, text, kind, defs=(), uses=(), cuses=(), soft=0, grp=None):
        o = Op(text, kind, defs, uses, cuses, soft, grp); o.idx = len(s.ops); s.ops.append(o); return o

    def build(s):
        lastw = {}; readers = defaultdict(list); chain = {}
        for o in s.ops:
            deps = {}
            def dep(p, lat):
                if p is o: return
                if p.idx not in deps or deps[p.idx][1] < lat: deps[p.idx] = (p, lat)
            for r in o.uses + o.cuses:
                p = lastw.get(r)
                if p is not None:
                    dep(p, s.raw_lat(p, o, r))
            for r in o.defs:
                p = lastw.get(r)
                if p is not None: dep(p, s.waw_lat(p, o))
                for q in readers[r]: dep(q, s.war_lat(q, o, r))
            c = CHAIN.get(o.kind)
            if c:
                if c in chain: dep(chain[c], 0)
                chain[c] = o
            for r in o.uses + o.cuses: readers[r].append(o)
            for r in o.defs:
                lastw[r] = o; readers[r] = []
            for p, lat in deps.values():
                o.preds.append((p, lat)); p.succs.append((o, lat))
    def raw_lat(s, p, o, r):
        if r[0] == 't':
            if p.kind in ('dsr', 'dsw'): return DS_LAT
            if p.kind in ('vld', 'dma', 'vst'): return p.soft or VM_LAT
            return 0
        if p.kind == 'mfma':
            if o.kind == 'mfma' and r in o.cuses: return 0
            return 44
        if p.kind == 'dsr': return DS_LAT
        if p.kind == 'vld': return p.soft or VM_LAT
        if p.kind in ('valu', 'trans', 'perm'):
            if o.kind == 'mfma': return 12 + (4 if p.kind == 'trans' else 0)
            if p.kind == 'trans': return 12
            if o.kind == 'perm': return 12
            return 4
        if p.kind == 'salu':
            if o.kind == 'dma' and r == ('s', 'm0'): return 8
            return 4
        return 4
    def waw_lat(s, p, o):
        if p.kind == 'mfma' and o.kind != 'mfma': return 44
        if p.kind == 'dsr': return DS_LAT
        if p.kind == 'vld': return p.soft or VM_LAT
        return 0
    def war_lat(s, q, o, r):
        if q.kind == 'mfma' and r in q.cuses and o.kind != 'mfma': return 20
        if q.kind in ('vst', 'dsw') and r[0] != 't': return 12
        return 0

    def schedule(s, verbose=False):
        s.build()
        ops = s.ops
        INF = 1 << 60
        mi = 0
        for o in ops:
            o.dl = INF
            if o.kind == 'mfma':
                o.dl = 16 * mi; mi += 1
        end = 16 * mi + 2000
        for o in reversed(ops):
            d = o.dl if o.dl != INF else end
            for q, lat in o.succs:
                d = min(d, q.dl - max(lat, COST[o.kind]))
            o.dl = d
        for o in ops:
            o.npred = len(o.preds); o.ready = 0; o.t = None
        import heapq
        avail = [o for o in ops if o.npred == 0]
        out = []
        now = 0; pipe_free = 0
        em = Emitter()
        nleft = len(ops)
        while nleft:
            best = None
            mf = next((o for o in avail if o.kind == 'mfma'), None)
            toks = [o for o in avail if o.kind == 'tok' and o.ready <= now and not em.needs_wait(o)]
            if toks:
                best = toks[0]
            elif mf is not None and mf.ready <= now and pipe_free <= now:
                best = mf
            else:
                tm = max(mf.ready, pipe_free) if mf is not None else INF
                cands = [o for o in avail if o.kind != 'mfma' and o.ready <= now]
                if cands:
                    room = tm - now
                    fit = [o for o in cands if COST[o.kind] + (4 if em.needs_wait(o) else 0) + 4 * em.hazard_nops(o) <= room]
                    if fit:
                        best = min(fit, key=lambda o: (o.dl, o.idx))
                    else:
                        c = min(cands, key=lambda o: (o.dl, o.idx))
                        if mf is None or c.dl <= mf.dl + 32 or room >= 4:
                            best = c
                if best is None:
                    nxt = [o.ready for o in avail if o.ready > now]
                    if mf is not None: nxt.append(tm)
                    now = max(now + 1, min(nxt))
                    continue
            o = best
            avail.remove(o)
            extra = em.emit(o, now)
            now += extra
            o.t = now
            if o.kind == 'mfma':
                pipe_free = now + 16
            now += COST[o.kind]
            nleft -= 1
            for q, lat in o.succs:
                q.ready = max(q.ready, o.t + lat)
                q.npred -= 1
                if q.npred == 0: avail.append(q)
        s.est_cycles = now
        s.em = em
        return em.lines

WAIT_OLD = 200

class Emitter:
    def __init__(s):
        s.lines = []
        s.hist = []
        s.lg = []
        s.vm = []
        s.pend = {}
        s.pendr = defaultdict(list)
        s.nwait = 0; s.nnop = 0
    def _need(s, o):
        lg = None; vm = None
        for r in o.uses + o.cuses + o.defs:
            p = s.pend.get(r)
            if p is None: continue
            if p.kind in ('dsr', 'dsw'):
                if p in s.lg:
                    n = len(s.lg) - 1 - s.lg.index(p)
                    lg = n if lg is None else min(lg, n)
            else:
                if p in s.vm:
                    ix = s.vm.index(p)
                    if p.grp is not None:
                        while ix + 1 < len(s.vm) and s.vm[ix + 1].grp == p.grp: ix += 1
                    n = len(s.vm) - 1 - ix
                    vm = n if vm is None else min(vm, n)
        return lg, vm
    def needs_wait(s, o):
        lg, vm = s._need(o)
        return lg is not None or vm is not None
    def hazard_nops(s, o):
        need = 0
        h = s.hist
        n = len(h)
        ou = set(o.uses); oc = set(o.cuses); od = set(o.defs)
        for d in range(1, min(n, 10) + 1):
            p = h[n - d]
            if p is None: continue
            gap = d - 1
            req = 0
            pd = set(p.defs)
            if p.kind == 'mfma':
                if o.kind == 'mfma':
                    if pd & ou: req = max(req, 8)
                    if pd & oc and set(p.defs) != oc: req = max(req, 6)
                    if (pd & od) and not (pd == oc and pd == od): req = max(req, 6)
                elif o.kind != 'tok':
                    if pd & (ou | od): req = max(req, 8)
                    if o.kind in ('valu', 'trans', 'perm') and set(p.cuses) & od: req = max(req, 3)
            if p.kind in ('valu', 'trans', 'perm'):
                vd = {r for r in pd if r[0] in 'va'}
                sd = {r for r in pd if r[0] == 's'}
                if o.kind == 'mfma' and vd & (ou | oc): req = max(req, 2)
                if p.kind == 'trans' and o.kind in ('valu', 'perm', 'mfma', 'vst', 'dsw') and vd & ou: req = max(req, 1 if o.kind != 'mfma' else 2)
                if o.kind == 'perm' and vd & (ou | od): req = max(req, 2)
                if sd & ou:
                    if o.kind in ('vld', 'vst', 'dma'): req = max(req, 5)
                    elif o.kind in ('valu', 'trans', 'perm'): req = max(req, 2)
                    else: req = max(req, 1)
                if 'readfirstlane' in o.text or 'readlane' in o.text:
                    if vd & ou: req = max(req, 1)
                if 'dpp' in o.text and vd & ou: req = max(req, 2)
            if p.kind == 'salu' and ('s', 'm0') in pd and o.kind == 'dma': req = max(req, 1)
            if p.kind in ('vst', 'dsw') and o.kind not in ('tok', 'bar', 'salu'):
                if p.kind == 'vst' and {r for r in p.uses if r[0] in 'va'} & od: req = max(req, 2)
            need = max(need, req - gap)
        return need
    def emit(s, o, now):
        extra = 0
        lg, vm = s._need(o)
        if lg is not None or vm is not None:
            parts = []
            if vm is not None:
                vm = min(vm, 62)
                parts.append(f"vmcnt({vm})")
                done = s.vm[:len(s.vm) - vm]; s.vm = s.vm[len(s.vm) - vm:]
                s._retire(done)
            if lg is not None:
                k = sum(1 for p in s.lg if p.t > now - WAIT_OLD)
                lg = min(lg, k, 14)
                parts.append(f"lgkmcnt({lg})")
                done = s.lg[:len(s.lg) - lg]; s.lg = s.lg[len(s.lg) - lg:]
                s._retire(done)
            s.lines.append(("s_waitcnt " + " ".join(parts), None)); s.hist.append(None); extra += 4; s.nwait += 1
        if o.kind == 'tok':
            return extra
        n = s.hazard_nops(o)
        if n > 0:
            s.lines.append((f"s_nop {n-1}", None)); s.hist += [None] * n; extra += 4 * n; s.nnop += n
        s.lines.append((o.text, o)); s.hist.append(o)
        o.t = now + extra
        if o.kind in ('dsr', 'dsw'):
            s.lg.append(o)
            for r in o.defs: s.pend[r] = o
        elif o.kind in ('vld', 'vst', 'dma'):
            s.vm.append(o)
            for r in o.defs: s.pend[r] = o
        else:
            for r in o.defs: s.pend.pop(r, None)
        return extra
    def _retire(s, done):
        for p in done:
            for r in p.defs:
                if s.pend.get(r) is p: del s.pend[r]
    def drain_text(s):
        return "s_waitcnt vmcnt(0) lgkmcnt(0)"
```

```python
import sys, math
from sched import *

NAME = "concat_heads__gqa_block_cached__gqa_block_cached__near_ridge"
SCALE = math.log2(math.e) * (128 ** -0.5)
TBIAS = 20.0
import struct
def f32(x): return "0x%08x" % struct.unpack("<I", struct.pack("<f", x))[0]

WS_O = 0
WS_WO = 32 << 20
LDS_V = 65536
LDS_WQ = 131072

sX, sK, sVv, sWQ, sWO, sWS = 8, 12, 16, 20, 24, 28
sW = 36; sItem = 37; sKm0 = 38; sVm0 = 39; sT1 = 40; sT2 = 41; sOdd = 42
sOb = 44
sWoS = 45
sWoD = 46
sWoM = 47
sScale = 48
sT3 = 50; sT4 = 51
sBad = 52

vLane = 1; vKrd = 2; vVrd = [3, 4]; vKsrc = 5; vVsrc = 6; vLin = 7
vWqSrc = [8, 9, 10, 11]; vWqWr = 12; vWqRd = [13, 14]; vXsrc = [15, 16, 17, 18, 19, 20]; vXwr = 21; vXrd = 22
vTmp = [24, 25, 26, 27, 28, 29, 30, 31]
vWoSrc = [8, 9]; vWoRd = [10, 11, 12, 13, 14]

def srd(n): return f"s[{n}:{n+3}]"

class K1Role:
    def __init__(s, role):
        s.role = role
        s.p = Prog()
        s.ntok = 0
        if role == 'A':
            s.t1 = [0, 1, 2]; s.t2 = [0, 1]; s.xt0 = 0
        else:
            s.t1 = [3, 4]; s.t2 = [2, 3, 4]; s.xt0 = 2
        s.units = [(0, t) for t in s.t1] + [(1, t) for t in s.t2]
        s.lastrd = {}
    def tok(s, name):
        s.ntok += 1
        return ('t', f"{name}#{s.ntok}")
    def add(s, *a, **k): return s.p.add(*a, **k)
    def mfma(s, d, a, b, c):
        cs = rs(c[0], c[1], 4) if c else "0"
        s.add(f"v_mfma_f32_16x16x32_bf16 {rs(d[0],d[1],4)}, {rs(a[0],a[1],4)}, {rs(b[0],b[1],4)}, {cs}", 'mfma',
              defs=R(d[0], d[1], 4), uses=R(a[0], a[1], 4) + R(b[0], b[1], 4), cuses=R(c[0], c[1], 4) if c else [])

    def kv_dma(s, n, extra_uses=()):
        if s.role != 'B': return []
        slot = n & 7
        goff = (n >> 4) * (16 * 131072) + (n & 15) * 8192
        toks = []
        eu = list(extra_uses)
        s.add(f"s_add_u32 s{sT1}, s{sItem}, {goff}", 'salu', defs=S(sT1), uses=S(sItem) + eu)
        s.add(f"s_add_u32 s{sT2}, s{sItem}, {goff+4096}", 'salu', defs=S(sT2), uses=S(sItem) + eu)
        for (m0b, sr, vs, o2) in ((sKm0, sK, vKsrc, 1024), (sVm0, sVv, vVsrc, 2048)):
            for hi in (0, 1):
                s.add(f"s_add_u32 m0, s{m0b}, {slot*8192 + hi*4096}", 'salu', defs=[('s', 'm0')], uses=S(m0b) + eu)
                so = sT2 if hi else sT1
                for off in (0, o2):
                    t = s.tok("dma")
                    s.add(f"buffer_load_dwordx4 v{vs}, {srd(sr)}, s{so} offen" + (f" offset:{off}" if off else "") + " nt lds", 'dma',
                          defs=[t], uses=V(vs) + S(so) + [('s', 'm0')] + eu)
                    toks.append(t)
        return toks

    def phase0(s):
        DW = 5
        aWS = 0
        aXS = 80
        DX = 3
        aXF = 152
        aWF = 200
        NWF = 8
        acc0 = 32
        def acc(ui, u, t): return acc0 + ui * 32 + (u * 2 + t) * 4
        s.acc = acc
        def wq_load(k):
            if k >= 20: return
            s.add(f"s_mov_b32 s{sT3}, {k*262144}", 'salu', defs=S(sT3))
            for i in range(4):
                r = aWS + (k % DW) * 16 + i * 4
                s.add(f"buffer_load_dwordx4 {rs('a',r,4)}, v{vWqSrc[i]}, {srd(sWQ)}, s{sT3} offen", 'vld', defs=A(r, 4), uses=V(vWqSrc[i]) + S(sT3), grp=('wq', k))
        def wq_write(k, free_tok):
            toks = []
            for i in range(4):
                r = aWS + (k % DW) * 16 + i * 4
                off = (k & 1) * 16384 + (i >> 1) * 8192 + (i & 1) * 1024
                t = s.tok("wqw")
                s.add(f"ds_write_b128 v{vWqWr}, {rs('a',r,4)} offset:{off}", 'dsw', defs=[t], uses=V(vWqWr) + A(r, 4) + free_tok)
                toks.append(t)
            return toks[-1:]
        def x_load(k2):
            if k2 >= 10: return
            for i in range(6):
                r = aXS + (k2 % DX) * 24 + i * 4
                s.add(f"buffer_load_dwordx4 {rs('a',r,4)}, v{vXsrc[i]}, {srd(sX)}, 0 offen" + (f" offset:{k2*128}" if k2 else ""), 'vld', defs=A(r, 4), uses=V(vXsrc[i]), grp=('x', k2))
        s.xtn = 0
        def x_transit(k2, xt):
            if k2 >= 10: return
            buf = s.xtn & 1; s.xtn += 1
            reg = ('t', f"xt{buf}")
            for bi in range(2):
                r = aXS + (k2 % DX) * 24 + (xt * 2 + bi) * 4
                s.add(f"ds_write_b128 v{vXwr}, {rs('a',r,4)} offset:{buf*2048 + bi*1024}", 'dsw', uses=V(vXwr) + A(r, 4))
            for ks in range(2):
                r = aXF + (k2 & 1) * 24 + (xt * 2 + ks) * 4
                t = s.tok("xr")
                s.add(f"ds_read_b128 {rs('a',r,4)}, v{vXrd} offset:{buf*2048 + ks*512}", 'dsr', defs=A(r, 4) + [t], uses=V(vXrd))
                s.last_xr = t
        x_load(0); wq_load(0); wq_load(1); x_load(1); wq_load(2); wq_load(3); x_load(2)
        for xt in range(3): x_transit(0, xt)
        wtok = wq_write(0, [])
        s.dma_tok = {}
        ndma = 0
        nfrag = 0
        last_rd = []
        for k in range(20):
            rdy = s.tok("wqrdy")
            s.add("s_barrier", 'bar', defs=[rdy], uses=wtok + last_rd)
            wq_load(k + 4)
            if k % 2 == 0 and ndma < 7:
                s.dma_tok[ndma] = s.kv_dma(ndma, extra_uses=[rdy]); ndma += 1
            did_write = False
            fr = 0
            for hd in range(2):
                for u in range(4):
                    for t in range(2):
                        r = aWF + (nfrag % NWF) * 4; nfrag += 1
                        for half in range(2):
                            off = (k & 1) * 16384 + hd * 8192 + half * 1024 + u * 256
                            tk = s.tok("wr")
                            s.add(f"ds_read_b64_tr_b16 {rs('a',r+2*half,2)}, v{vWqRd[t]} offset:{off}", 'dsr', defs=A(r + 2 * half, 2) + [tk], uses=V(vWqRd[t]) + [rdy])
                            last_rd = [tk]
                        for ui, (h, tile) in enumerate(s.units):
                            if h != hd: continue
                            xf = aXF + ((k >> 1) & 1) * 24 + ((tile - s.xt0) * 2 + (k & 1)) * 4
                            d = acc(ui, u, t)
                            s.mfma(('v', d), ('a', r), ('a', xf), ('v', d) if k else None)
                        fr += 1
                        if fr == 3 and k + 1 < 20:
                            wtok = wq_write(k + 1, [rdy])
                        if (k & 1) == 0 and fr in (6, 9, 12):
                            x_transit((k >> 1) + 1, (fr - 6) // 3)
                        if (k & 1) == 1 and fr == 2:
                            x_load((k >> 1) + 3)
        s.p0_last_rd = last_rd
        s.Q = {}
        qbase = [192, 208, 224, 240, None]
        for ui, (h, tile) in enumerate(s.units):
            qb = qbase[ui] if finalq(ui) else None
            s.Q[(h, tile)] = qbase[ui] if ui < 4 else 176
        for ui, (h, tile) in enumerate(s.units):
            order = range(4) if ui < 4 else (3, 2, 1, 0)
            for u in order:
                t0 = acc(ui, u, 0); t1 = acc(ui, u, 1)
                for base in (t0, t1):
                    for e in (0, 2):
                        s.add(f"v_pk_mul_f32 v[{base+e}:{base+e+1}], v[{base+e}:{base+e+1}], s[{sScale}:{sScale+1}]", 'valu', defs=V(base + e, 2), uses=V(base + e, 2) + S(sScale, 2))
                tm = vTmp[(u & 1) * 4:(u & 1) * 4 + 4]
                for i, src in enumerate((t0, t0 + 2, t1, t1 + 2)):
                    s.add(f"v_cvt_pk_bf16_f32 v{tm[i]}, v{src}, v{src+1}", 'valu', defs=V(tm[i]), uses=V(src, 2))
                q = s.Q[(h, tile)] + u * 4
                for i in range(4):
                    s.add(f"v_cndmask_b32 v{q+i}, v{tm[i]}, v{tm[i^2]}, s[{sOdd}:{sOdd+1}]", 'valu', defs=V(q + i), uses=V(tm[i]) + V(tm[i ^ 2]) + S(sOdd, 2))

    def attention(s, hd):
        tiles = s.t1 if hd == 0 else s.t2
        n = len(tiles)
        aKF = 0; aVF = 32
        aOnes = 252
        vO = 32; vL = vO + 96; vS = vL + 12; vP = vS + 16; vN = vP + 8
        def O(i, t): return vO + i * 32 + t * 4
        def k_reads(st, rdy):
            slot = (hd * 16 + st) & 7
            for tau in range(2):
                for u in range(4):
                    r = aKF + (tau * 4 + u) * 4
                    tk = s.tok("kr")
                    s.add(f"ds_read_b128 {rs('a',r,4)}, v{vKrd} offset:{slot*8192 + tau*4096 + u*256}", 'dsr', defs=A(r, 4) + [tk], uses=V(vKrd) + [rdy])
                    s.last_att_rd = tk
        def vreg(st, t):
            if t >= 4 and (st & 1): return aVF + 32 + (t - 4) * 4
            return aVF + t * 4
        def v_reads(st, rdy, ts):
            slot = (hd * 16 + st) & 7
            for t in ts:
                r = vreg(st, t)
                for half in range(2):
                    tk = s.tok("vr")
                    s.add(f"ds_read_b64_tr_b16 {rs('a',r+2*half,2)}, v{vVrd[t&1]} offset:{slot*8192 + half*4096 + (t>>1)*256}", 'dsr', defs=A(r + 2 * half, 2) + [tk], uses=V(vVrd[t & 1]) + [rdy])
                    s.last_att_rd = tk
        def qk(i, sb, use_negm=True):
            q = s.Q[(hd, tiles[i])]
            for tau in range(2):
                d = vS + sb * 8 + tau * 4
                for u in range(4):
                    c = ('v', d) if u else (('v', vN + i * 4) if use_negm else None)
                    s.mfma(('v', d), ('a', aKF + (tau * 4 + u) * 4), ('v', q + u * 4), c)
        def sm(sb):
            for e in range(8):
                r = vS + sb * 8 + e
                s.add(f"v_exp_f32 v{r}, v{r}", 'trans', defs=V(r), uses=V(r))
                if e & 1:
                    s.add(f"v_cvt_pk_bf16_f32 v{vP+sb*4+(e>>1)}, v{r-1}, v{r}", 'valu', defs=V(vP + sb * 4 + (e >> 1)), uses=V(r - 1, 2))
        def pv(st, i, sb):
            for t in range(8):
                d = O(i, t)
                s.mfma(('v', d), ('a', vreg(st, t)), ('v', vP + sb * 4), ('v', d) if st else None)
            d = vL + i * 4
            s.mfma(('v', d), ('a', aOnes), ('v', vP + sb * 4), ('v', d) if st else None)
        def barrier(st):
            g = hd * 16 + st
            rdy = s.tok("kvrdy")
            uses = list(s.dma_tok.get(g, []))[-1:] + s.bar_extra
            s.bar_extra = []
            if getattr(s, 'last_att_rd', None): uses.append(s.last_att_rd)
            s.add("s_barrier", 'bar', defs=[rdy], uses=uses)
            if g + 7 < 32 and (g + 7) not in s.dma_tok:
                s.dma_tok[g + 7] = s.kv_dma(g + 7, extra_uses=[rdy])
            return rdy
        rdy = barrier(0)
        if hd == 0: s.after_p0_barrier(rdy)
        k_reads(0, rdy)
        v_reads(0, rdy, range(8))
        sb = 0
        for i in range(n):
            qk(i, sb, use_negm=False)
            b = vS + sb * 8
            m = vTmp[0 + 2 * (i & 1)]; t = vTmp[1 + 2 * (i & 1)]
            s.add(f"v_max3_f32 v{m}, v{b}, v{b+1}, v{b+2}", 'valu', defs=V(m), uses=V(b, 3))
            s.add(f"v_max3_f32 v{m}, v{m}, v{b+3}, v{b+4}", 'valu', defs=V(m), uses=V(m) + V(b + 3, 2))
            s.add(f"v_max3_f32 v{m}, v{m}, v{b+5}, v{b+6}", 'valu', defs=V(m), uses=V(m) + V(b + 5, 2))
            s.add(f"v_max_f32 v{m}, v{m}, v{b+7}", 'valu', defs=V(m), uses=V(m) + V(b + 7))
            for pl in ("v_permlane32_swap_b32", "v_permlane16_swap_b32"):
                s.add(f"v_mov_b32 v{t}, v{m}", 'valu', defs=V(t), uses=V(m))
                s.add(f"{pl} v{m}, v{t}", 'perm', defs=V(m) + V(t), uses=V(m) + V(t))
                s.add(f"v_max_f32 v{m}, v{m}, v{t}", 'valu', defs=V(m), uses=V(m) + V(t))
            for e in range(4):
                s.add(f"v_sub_f32 v{vN+i*4+e}, {f32(-TBIAS)}, v{m}", 'valu', defs=V(vN + i * 4 + e), uses=V(m))
            sb ^= 1
        seq = [(st, i) for st in range(16) for i in range(n)]
        rdys = {0: rdy}
        qk(0, sb);
        for k, (st, i) in enumerate(seq):
            cur = sb
            sm(cur)
            nxt = seq[k + 1] if k + 1 < len(seq) else None
            if nxt:
                nst, ni = nxt
                if ni == 0:
                    rdys[nst] = barrier(nst)
                    k_reads(nst, rdys[nst])
                    v_reads(nst, rdys[nst], range(4, 8))
                sb ^= 1
                qk(ni, sb)
            pv(st, i, cur)
            if nxt and nxt[1] == 0:
                v_reads(nxt[0], rdys[nxt[0]], range(0, 4))
            s.step_hook(hd, st, i)
        for i in range(n):
            l = vL + i * 4
            s.add(f"v_rcp_f32 v{l}, v{l}", 'trans', defs=V(l), uses=V(l))
            s.add(f"v_mov_b32 v{l+1}, v{l}", 'valu', defs=V(l + 1), uses=V(l))
            s.add(f"s_add_u32 s{sT4}, s{sOb}, {hd*16*20480 + tiles[i]*1024}", 'salu', defs=S(sT4), uses=S(sOb))
            for u in range(4):
                b = O(i, 2 * u)
                for e in range(0, 8, 2):
                    s.add(f"v_pk_mul_f32 v[{b+e}:{b+e+1}], v[{b+e}:{b+e+1}], v[{l}:{l+1}]", 'valu', defs=V(b + e, 2), uses=V(b + e, 2) + V(l, 2))
                for e in range(4):
                    s.add(f"v_cvt_pk_bf16_f32 v{b+e}, v{b+2*e}, v{b+2*e+1}", 'valu', defs=V(b + e), uses=V(b + 2 * e, 2))
                if u:
                    s.add(f"s_add_u32 s{sT4}, s{sT4}, 5120", 'salu', defs=S(sT4), uses=S(sT4))
                s.add(f"buffer_store_dwordx4 v[{b}:{b+3}], v{vLin}, {srd(sWS)}, s{sT4} offen", 'vst', uses=V(b, 4) + V(vLin) + S(sT4))

    def after_p0_barrier(s, rdy):
        s.wo_rdy = rdy
        if s.role != 'B': return
        a = s.add
        t0, t1, t2 = vTmp[4], vTmp[5], vTmp[6]
        a(f"v_bfe_u32 v{t0}, v{vLane}, 2, 2", 'valu', defs=V(t0), uses=V(vLane) + [rdy])
        a(f"v_mul_u32_u24 v{t0}, 1280, v{t0}", 'valu', defs=V(t0), uses=V(t0))
        a(f"v_lshrrev_b32 v{t1}, 4, v{vLane}", 'valu', defs=V(t1), uses=V(vLane) + [rdy])
        a(f"v_lshl_add_u32 v{t0}, v{t1}, 6, v{t0}", 'valu', defs=V(t0), uses=V(t0) + V(t1))
        a(f"v_and_b32 v{t1}, 3, v{vLane}", 'valu', defs=V(t1), uses=V(vLane))
        a(f"v_lshl_add_u32 v{vWoSrc[0]}, v{t1}, 4, v{t0}", 'valu', defs=V(vWoSrc[0]), uses=V(t0) + V(t1))
        a(f"v_xor_b32 v{t1}, 2, v{t1}", 'valu', defs=V(t1), uses=V(t1))
        a(f"v_lshl_add_u32 v{t0}, v{t1}, 4, v{t0}", 'valu', defs=V(t0), uses=V(t0) + V(t1))
        a(f"v_add_u32 v{vWoSrc[1]}, 5120, v{t0}", 'valu', defs=V(vWoSrc[1]), uses=V(t0))
        for ct in range(5):
            a(f"v_cndmask_b32 v{vWoRd[ct]}, v{vVrd[ct&1]}, v{vVrd[(ct+1)&1]}, s[62:63]", 'valu', defs=V(vWoRd[ct]), uses=V(vVrd[0]) + V(vVrd[1]) + S(62, 2) + [rdy])
            a(f"v_add_u32 v{vWoRd[ct]}, s{56+ct}, v{vWoRd[ct]}", 'valu', defs=V(vWoRd[ct]), uses=V(vWoRd[ct]) + S(56 + ct))
        s.wo_tok = {}
        s.wo_free = {0: [], 1: []}
    def wo_dma(s, u):
        buf = u & 1
        toks = []
        for rho in range(8):
            if (rho & 1) == 0:
                s.add(f"s_add_u32 s{sT3}, s{sWoS}, {(32*u + 4*rho)*1280}", 'salu', defs=S(sT3), uses=S(sWoS))
            s.add(f"s_add_u32 m0, s{sWoM}, {buf*8192 + rho*1024}", 'salu', defs=[('s', 'm0')], uses=S(sWoM))
            t = s.tok("wod")
            s.add(f"buffer_load_dwordx4 v{vWoSrc[rho&1]}, {srd(sWO)}, s{sT3} offen lds", 'dma', defs=[t], uses=V(vWoSrc[rho & 1]) + S(sT3) + [('s', 'm0')] + s.wo_free[buf] + [s.wo_rdy])
            toks.append(t)
        s.wo_tok[u] = toks[-1]
    def wo_xpose(s, u):
        buf = u & 1
        aW = 96 + buf * 20
        s.add(f"s_add_u32 s{sT3}, s{sWoD}, {u*5120}", 'salu', defs=S(sT3), uses=S(sWoD))
        for ct in range(5):
            r = aW + ct * 4
            for half in range(2):
                tk = s.tok("wor")
                s.add(f"ds_read_b64_tr_b16 {rs('a',r+2*half,2)}, v{vWoRd[ct]} offset:{buf*8192 + half*4096}", 'dsr', defs=A(r + 2 * half, 2) + [tk], uses=V(vWoRd[ct]) + [s.wo_tok[u]])
            s.wo_free[buf] = [tk]
        for ct in range(5):
            r = aW + ct * 4
            if ct == 4:
                s.add(f"s_add_u32 s{sT3}, s{sT3}, 4096", 'salu', defs=S(sT3), uses=S(sT3))
            off = ct * 1024 if ct < 4 else 0
            s.add(f"buffer_store_dwordx4 {rs('a',r,4)}, v{vLin}, {srd(sWS)}, s{sT3} offen" + (f" offset:{off}" if off else ""), 'vst', uses=A(r, 4) + V(vLin) + S(sT3))
    def step_hook(s, hd, st, i):
        if s.role != 'B' or hd != 0 or i != 0: return
        if st == 0: s.wo_dma(0)
        if st == 1: s.wo_dma(1)
        if st == 6: s.wo_xpose(0); s.wo_dma(2)
        if st == 7: s.wo_xpose(1); s.wo_dma(3)
        if st == 13: s.wo_xpose(2)
        if st == 14: s.wo_xpose(3)

    def gen(s):
        s.bar_extra = []
        s.phase0()
        s.bar_extra = s.p0_last_rd + [s.last_xr]
        s.attention(0)
        s.attention(1)
        lines = s.p.schedule()
        print(f"role {s.role}: ops {len(s.p.ops)} est cycles {s.p.est_cycles} waits {s.p.em.nwait} nops {s.p.em.nnop}", file=sys.stderr)
        return [t for t, _ in lines]

def finalq(ui): return True

def k1_prologue():
    L = []; a = L.append
    a("s_cmp_ge_u32 s2, 256"); a("s_cbranch_scc1 K1_end")
    a("s_and_b32 s3, s2, 7")
    a("s_lshr_b32 s4, s3, 2")
    a("s_mul_i32 s5, s4, 40")
    a("s_add_u32 s6, s0, s5"); a("s_addc_u32 s7, s1, 0")
    a("s_load_dwordx8 s[64:71], s[6:7], 0")
    a("s_load_dwordx2 s[72:73], s[6:7], 32")
    a("s_load_dwordx2 s[74:75], s[0:1], 96")
    a(f"v_and_b32 v{vLane}, 63, v0")
    a("v_lshrrev_b32 v24, 6, v0")
    a("s_lshr_b32 s5, s2, 3")
    a(f"v_readfirstlane_b32 s{sW}, v24")
    a("s_and_b32 s76, s3, 3"); a("s_lshl_b32 s76, s76, 2"); a("s_and_b32 s77, s5, 3"); a("s_add_u32 s76, s76, s77")
    a("s_lshr_b32 s77, s5, 2")
    a(f"s_and_b32 s78, s{sW}, 1")
    a(f"s_lshr_b32 s79, s{sW}, 1")
    a(f"s_lshl_b32 s{sItem}, s77, 5"); a(f"s_add_u32 s{sItem}, s{sItem}, s76"); a(f"s_lshl_b32 s{sItem}, s{sItem}, 17")
    a(f"s_lshl_b32 s{sKm0}, s78, 11")
    a(f"s_lshl_b32 s{sVm0}, s78, 10"); a(f"s_add_u32 s{sVm0}, s{sVm0}, {LDS_V}")
    a(f"s_mov_b32 s{sOdd}, 0xffff0000"); a(f"s_mov_b32 s{sOdd+1}, 0xffff0000")
    a(f"s_mov_b32 s{sScale}, {f32(SCALE)}"); a(f"s_mov_b32 s{sScale+1}, {f32(SCALE)}")
    a("s_lshl_b32 s80, s4, 4"); a("s_lshl_b32 s81, s77, 1"); a("s_add_u32 s80, s80, s81"); a("s_add_u32 s80, s80, s78")
    a("s_lshl_b32 s80, s80, 5"); a("s_add_u32 s80, s80, s76"); a(f"s_mul_i32 s{sOb}, s80, 20480")
    if WS_O: a(f"s_add_u32 s{sOb}, s{sOb}, {WS_O}")
    a("s_lshl_b32 s80, s78, 4"); a("s_add_u32 s80, s80, s76")
    a(f"s_mul_i32 s{sWoS}, s80, {128*1280}"); a("s_mul_i32 s81, s77, 160"); a("s_and_b32 s81, s81, 0xffffffc0"); a(f"s_add_u32 s{sWoS}, s{sWoS}, s81")
    a("s_lshl_b32 s81, s4, 3"); a("s_add_u32 s81, s81, s77"); a("s_lshl_b32 s81, s81, 5"); a("s_add_u32 s81, s81, s80"); a(f"s_mul_i32 s{sWoD}, s81, 20480"); a(f"s_add_u32 s{sWoD}, s{sWoD}, {WS_WO}")
    a(f"s_lshl_b32 s{sWoM}, s78, 14"); a(f"s_add_u32 s{sWoM}, s{sWoM}, {LDS_WQ}")
    a("s_and_b32 s81, s77, 1"); a("s_cmp_eq_u32 s81, 1")
    a("s_cselect_b64 s[62:63], -1, 0")
    a("s_cselect_b32 s81, 256, 0")
    for ct in range(5):
        a(f"s_sub_u32 s{56+ct}, s{sWoM}, {LDS_V - (ct>>1)*256}")
        if ct & 1: a(f"s_add_u32 s{56+ct}, s{56+ct}, s81")
    l = vLane
    a(f"v_lshlrev_b32 v{vLin}, 4, v{l}")
    a(f"v_lshrrev_b32 v24, 4, v{l}")
    a(f"v_bfe_u32 v25, v{l}, 2, 2")
    a(f"v_and_b32 v26, 3, v{l}")
    a(f"v_and_b32 v27, 15, v{l}")
    a("v_lshrrev_b32 v28, 3, v27"); a("v_lshlrev_b32 v28, 1, v28"); a("v_xor_b32 v28, v28, v24"); a("v_lshlrev_b32 v28, 4, v28")
    a(f"v_lshl_add_u32 v{vKrd}, v25, 10, v28"); a(f"v_lshl_add_u32 v{vKrd}, v26, 6, v{vKrd}")
    a("v_lshrrev_b32 v29, 3, v27"); a(f"v_lshl_add_u32 v{vXrd}, v29, 10, v28"); a("v_and_b32 v29, 7, v27"); a(f"v_lshl_add_u32 v{vXrd}, v29, 6, v{vXrd}")
    a("s_lshl_b32 s80, s78, 12"); a("s_lshl_b32 s81, s79, 16"); a("s_add_u32 s80, s80, s81"); a("s_add_u32 s80, s80, 57344")
    a(f"v_add_u32 v{vXrd}, s80, v{vXrd}"); a(f"v_add_u32 v{vXwr}, s80, v{vLin}")
    a("v_lshlrev_b32 v28, 10, v24"); a("v_lshl_add_u32 v28, v25, 6, v28"); a("v_lshl_add_u32 v28, v26, 3, v28")
    a(f"v_add_u32 v28, {LDS_V}, v28")
    a("v_and_b32 v29, 1, v24"); a(f"v_lshl_add_u32 v{vVrd[0]}, v29, 5, v28"); a("v_xor_b32 v29, 1, v29"); a(f"v_lshl_add_u32 v{vVrd[1]}, v29, 5, v28")
    a("s_lshl_b32 s80, s78, 1"); a("v_xor_b32 v28, s80, v26"); a("v_lshlrev_b32 v28, 4, v28"); a("v_lshl_add_u32 v28, v24, 6, v28"); a("v_lshl_add_u32 v28, v25, 8, v28")
    a(f"v_add_u32 v{vKsrc}, s{sKm0}, v28"); a("s_lshl_b32 s80, s78, 10"); a(f"v_add_u32 v{vVsrc}, s80, v28")
    a("v_xor_b32 v28, s78, v26"); a("v_lshlrev_b32 v28, 4, v28"); a("v_lshl_add_u32 v28, v24, 6, v28"); a("v_lshl_add_u32 v28, v25, 13, v28")
    a(f"s_lshl_b32 s80, s{sW}, 16"); a("s_lshl_b32 s81, s76, 8"); a("s_add_u32 s80, s80, s81")
    a(f"v_add_u32 v{vWqSrc[0]}, s80, v28"); a(f"v_add_u32 v{vWqSrc[1]}, 32768, v{vWqSrc[0]}"); a(f"v_add_u32 v{vWqSrc[2]}, 4096, v{vWqSrc[0]}"); a(f"v_add_u32 v{vWqSrc[3]}, 4096, v{vWqSrc[1]}")
    a(f"s_lshl_b32 s80, s{sW}, 11"); a(f"s_add_u32 s80, s80, {LDS_WQ}"); a(f"v_add_u32 v{vWqWr}, s80, v{vLin}")
    a("v_and_b32 v29, 1, v24"); a("v_xor_b32 v29, v29, v26"); a("v_lshlrev_b32 v29, 4, v29"); a("v_lshl_add_u32 v29, v24, 11, v29"); a("v_lshl_add_u32 v29, v25, 6, v29"); a(f"v_add_u32 v29, {LDS_WQ}, v29")
    a("v_and_b32 v30, 1, v26"); a(f"v_lshl_add_u32 v{vWqRd[0]}, v30, 3, v29"); a("v_xor_b32 v30, 1, v30"); a(f"v_lshl_add_u32 v{vWqRd[1]}, v30, 3, v29")
    a(f"v_bfe_u32 v28, v{l}, 2, 3"); a("v_mul_u32_u24 v28, 1280, v28"); a(f"v_lshrrev_b32 v29, 5, v{l}"); a("v_lshl_add_u32 v28, v29, 6, v28")
    a("s_mul_i32 s80, s77, 160"); a("s_mul_i32 s81, s78, 80"); a("s_add_u32 s80, s80, s81"); a("s_lshl_b32 s81, s79, 5"); a("s_add_u32 s80, s80, s81"); a("s_mul_i32 s80, s80, 1280")
    a("v_add_u32 v28, s80, v28")
    a(f"v_lshl_add_u32 v{vXsrc[0]}, v26, 4, v28"); a("v_xor_b32 v29, 2, v26"); a("v_lshl_add_u32 v29, v29, 4, v28"); a(f"v_add_u32 v{vXsrc[1]}, 10240, v29")
    for xt in (1, 2):
        for bi in range(2):
            a(f"v_add_u32 v{vXsrc[xt*2+bi]}, {xt*20480}, v{vXsrc[bi]}")
    a("v_mov_b32 v28, 0x3f803f80")
    for i in range(4): a(f"v_accvgpr_write_b32 a{252+i}, v28")
    a("s_waitcnt lgkmcnt(0)")
    for (sr, lo, size) in ((sX, 64, 8*160*640*2), (sK, 66, 8*32*512*128*2), (sVv, 68, 8*32*512*128*2), (sWQ, 70, 640*4096*2), (sWO, 72, 640*4096*2), (sWS, 74, 1 << 28)):
        a(f"s_mov_b32 s{sr}, s{lo}"); a(f"s_and_b32 s{sr+1}, s{lo+1}, 0xffff"); a(f"s_mov_b32 s{sr+2}, {size}"); a(f"s_mov_b32 s{sr+3}, 0x20000")
    a("s_cmp_eq_u32 s79, 1")
    a("s_cbranch_scc1 K1_roleB")
    return L

def k2():
    L = []; a = L.append
    a("s_cmp_ge_u32 s2, 256"); a("s_cbranch_scc1 K2_end")
    a("s_load_dwordx2 s[4:5], s[0:1], 96"); a("s_load_dwordx2 s[6:7], s[0:1], 80")
    a("v_lshrrev_b32 v2, 6, v0"); a("v_and_b32 v1, 63, v0"); a("v_lshlrev_b32 v3, 4, v1")
    a("v_readfirstlane_b32 s3, v2")
    a("v_add_u32 v4, 4096, v3")
    a("s_and_b32 s27, s2, 7"); a("s_lshr_b32 s28, s2, 3")
    a("s_lshr_b32 s24, s27, 2"); a("s_and_b32 s25, s27, 3"); a("s_lshl_b32 s25, s25, 2"); a("s_lshr_b32 s29, s28, 3"); a("s_add_u32 s25, s25, s29"); a("s_and_b32 s26, s28, 7")
    a("s_lshl_b32 s30, s24, 4"); a("s_add_u32 s30, s30, s25"); a("s_lshl_b32 s30, s30, 7"); a("s_lshl_b32 s31, s3, 5"); a("s_add_u32 s30, s30, s31"); a("s_mul_i32 s30, s30, 5120")
    if WS_O: a(f"s_add_u32 s30, s30, {WS_O}")
    a("s_lshl_b32 s32, s24, 3"); a("s_add_u32 s32, s32, s26"); a("s_lshl_b32 s32, s32, 7"); a("s_add_u32 s32, s32, s31"); a("s_mul_i32 s32, s32, 5120"); a(f"s_add_u32 s32, s32, {WS_WO}")
    a("s_waitcnt lgkmcnt(0)")
    a("s_mov_b32 s16, s4"); a("s_and_b32 s17, s5, 0xffff"); a("s_mov_b32 s18, 0x10000000"); a("s_mov_b32 s19, 0x20000")
    a("s_mov_b32 s20, s6"); a("s_and_b32 s21, s7, 0xffff"); a(f"s_mov_b32 s22, {8*160*1280*2}"); a("s_mov_b32 s23, 0x20000")
    p = Prog()
    ST = 5
    def loads(ks):
        if ks >= 32: return
        s = ks % ST
        p.add(f"s_add_u32 s33, s30, {ks*5120}", 'salu', defs=S(33), uses=S(30))
        p.add(f"s_add_u32 s34, s32, {ks*5120}", 'salu', defs=S(34), uses=S(32))
        for (so, ro) in ((33, 0), (34, 20)):
            for t in range(5):
                r = 16 + s * 40 + ro + t * 4
                va = 3 if t < 4 else 4
                p.add(f"buffer_load_dwordx4 v[{r}:{r+3}], v{va}, s[16:19], s{so} offen" + (f" offset:{t*1024}" if 0 < t < 4 else ""), 'vld', defs=V(r, 4), uses=V(va) + S(so), grp=ks)
    for ks in range(ST - 1): loads(ks)
    for ks in range(32):
        loads(ks + ST - 1)
        s = ks % ST
        for ct in range(5):
            for qt in range(5):
                w = 16 + s * 40 + 20 + ct * 4; o = 16 + s * 40 + qt * 4; c = (ct * 5 + qt) * 4
                p.add(f"v_mfma_f32_16x16x32_bf16 a[{c}:{c+3}], v[{w}:{w+3}], v[{o}:{o+3}], " + (f"a[{c}:{c+3}]" if ks else "0"), 'mfma', defs=A(c, 4), uses=V(w, 4) + V(o, 4), cuses=A(c, 4) if ks else [])
    p.add("s_mul_i32 s33, s3, 25600", 'salu', defs=S(33), uses=S(3))
    p.add("v_add_u32 v5, s33, v3", 'valu', defs=V(5), uses=V(3) + S(33))
    toks = []
    for t in range(25):
        tk = ('t', f"w{t}")
        p.add(f"ds_write_b128 v5, a[{t*4}:{t*4+3}] offset:{t*1024}", 'dsw', defs=[tk], uses=V(5) + A(t * 4, 4))
        toks = [tk]
    p.add("s_barrier", 'bar', defs=T("red"), uses=toks)
    L += [t for t, _ in p.schedule()]
    print(f"K2 est cycles {p.est_cycles}", file=sys.stderr)
    a("v_and_b32 v6, 15, v1"); a("v_lshrrev_b32 v7, 4, v1")
    a("v_mul_u32_u24 v6, 2560, v6"); a("v_lshl_add_u32 v6, v7, 3, v6")
    a("s_mul_i32 s33, s25, 80"); a("s_mul_i32 s33, s33, 2560"); a("s_mul_i32 s34, s24, 1280"); a("s_add_u32 s33, s33, s34"); a("s_mul_i32 s34, s26, 160"); a("s_add_u32 s33, s33, s34")
    a("s_mov_b32 s35, s3")
    a("K2_red:")
    a("s_lshl_b32 s36, s35, 10"); a("v_add_u32 v8, s36, v3")
    a("ds_read_b128 v[16:19], v8"); a("ds_read_b128 v[20:23], v8 offset:25600"); a("ds_read_b128 v[24:27], v8 offset:51200")
    a("v_add_u32 v9, 25600, v8"); a("ds_read_b128 v[28:31], v9 offset:51200")
    a("s_mul_i32 s37, s35, 52"); a("s_lshr_b32 s37, s37, 8"); a("s_mul_i32 s38, s37, 5"); a("s_sub_u32 s38, s35, s38")
    a("s_mul_i32 s38, s38, 40960"); a("s_lshl_b32 s37, s37, 5"); a("s_add_u32 s38, s38, s37"); a("s_add_u32 s38, s38, s33")
    a("s_waitcnt lgkmcnt(0)")
    for i in range(4):
        a(f"v_add_f32 v{16+i}, v{16+i}, v{20+i}"); a(f"v_add_f32 v{24+i}, v{24+i}, v{28+i}")
    for i in range(4): a(f"v_add_f32 v{16+i}, v{16+i}, v{24+i}")
    a("v_cvt_pk_bf16_f32 v16, v16, v17"); a("v_cvt_pk_bf16_f32 v17, v18, v19")
    a("buffer_store_dwordx2 v[16:17], v6, s[20:23], s38 offen")
    a("s_add_u32 s35, s35, 4"); a("s_cmp_lt_u32 s35, 25"); a("s_cbranch_scc1 K2_red")
    a("K2_end:"); a("s_endpgm")
    return L

def kd(name, vg, sg, acc):
    return [f".amdhsa_kernel {name}", f"  .amdhsa_next_free_vgpr {vg}", f"  .amdhsa_next_free_sgpr {sg}", f"  .amdhsa_accum_offset {acc}",
            "  .amdhsa_group_segment_fixed_size 0", "  .amdhsa_kernarg_size 104", "  .amdhsa_user_sgpr_count 2",
            "  .amdhsa_user_sgpr_kernarg_segment_ptr 1", "  .amdhsa_system_sgpr_workgroup_id_x 1", ".end_amdhsa_kernel"]

def main(out):
    L = []
    L.append("; @launch kernel=attn_kernel grid=(256,1,1) block=(256,1,1) lds=163840")
    L.append("; @launch kernel=oproj_kernel grid=(256,1,1) block=(256,1,1) lds=102400")
    L += ['.amdgcn_target "amdgcn-amd-amdhsa--gfx950"', ".text", ".globl attn_kernel", ".p2align 8", ".type attn_kernel,@function", "attn_kernel:"]
    L += k1_prologue()
    L += K1Role('A').gen()
    L += ["s_endpgm", "K1_roleB:"]
    L += K1Role('B').gen()
    L += ["K1_end:", "s_endpgm"]
    L += [".globl oproj_kernel", ".p2align 8", ".type oproj_kernel,@function", "oproj_kernel:"]
    L += k2()
    L += ['.section .rodata,"a"', ".p2align 6"] + kd("attn_kernel", 512, 96, 256) + [".p2align 6"] + kd("oproj_kernel", 356, 64, 256)
    open(out, "w").write("\n".join(L) + "\n")

main(sys.argv[1] if len(sys.argv) > 1 else "k1.s")
```

```python
import re, sys
from collections import defaultdict

def R(kind, lo, n=1):
    return [(kind, lo + i) for i in range(n)]
def V(lo, n=1): return R('v', lo, n)
def A(lo, n=1): return R('a', lo, n)
def S(lo, n=1): return R('s', lo, n)
def T(name): return [('t', name)]

def rs(kind, lo, n=1):
    return f"{kind}{lo}" if n == 1 else f"{kind}[{lo}:{lo+n-1}]"

class Op:
    __slots__ = ("text", "kind", "defs", "uses", "cuses", "idx", "preds", "succs", "npred", "ready", "dl", "t", "soft", "grp", "nowait", "pos", "cost", "mark", "it", "cls", "key")
    def __init__(s, text, kind, defs=(), uses=(), cuses=(), soft=0, grp=None):
        s.text = text; s.kind = kind; s.defs = list(defs); s.uses = list(uses); s.cuses = list(cuses)
        s.preds = []; s.succs = []; s.soft = soft; s.grp = grp; s.mark = None

COST = dict(mfma=8, valu=4, trans=8, dsr=4, dsw=4, vld=4, vst=4, dma=4, salu=4, bar=4, tok=0, perm=4)
CHAIN = dict(mfma='M', dsr='D', dsw='D', vld='G', vst='G', dma='G', bar='B')
DS_LAT = 140
VM_LAT = 1200
ASAP_SLACK = 64
VM_GAP = 40
DS_GAPS = [16, 8, 40]

class Prog:
    def __init__(s, pace=True):
        s.ops = []; s.pace = pace; s.cur = None; s.ncls = 0
    def iter(s, loop, i):
        s.cur = (loop, i) if loop is not None else None; s.ncls = 0
    def add(s, text, kind, defs=(), uses=(), cuses=(), soft=0, grp=None):
        o = Op(text, kind, defs, uses, cuses, soft, grp); o.idx = len(s.ops); s.ops.append(o)
        o.it = s.cur; o.cls = s.ncls; s.ncls += 1
        return o

    def build(s):
        lastw = {}; readers = defaultdict(list); chain = {}
        for o in s.ops:
            deps = {}
            def dep(p, lat):
                if p is o: return
                if p.idx not in deps or deps[p.idx][1] < lat: deps[p.idx] = (p, lat)
            for r in o.uses + o.cuses:
                p = lastw.get(r)
                if p is not None:
                    dep(p, s.raw_lat(p, o, r))
            for r in o.defs:
                p = lastw.get(r)
                if p is not None: dep(p, s.waw_lat(p, o))
                for q in readers[r]: dep(q, s.war_lat(q, o, r))
            c = CHAIN.get(o.kind)
            if c:
                if c in chain:
                    gap = 0
                    if c == 'G' and s.pace: gap = VM_GAP
                    if c == 'D':
                        pt = chain[c].text
                        gap = DS_GAPS[0] if pt.startswith("ds_read_b128") else (DS_GAPS[2] if pt.startswith("ds_write") else DS_GAPS[1])
                    dep(chain[c], gap)
                chain[c] = o
            for r in o.uses + o.cuses: readers[r].append(o)
            for r in o.defs:
                lastw[r] = o; readers[r] = []
            for p, lat in deps.values():
                o.preds.append((p, lat)); p.succs.append((o, lat))
    def raw_lat(s, p, o, r):
        if r[0] == 't':
            if p.kind in ('dsr', 'dsw'): return DS_LAT
            if p.kind in ('vld', 'dma', 'vst'): return p.soft or VM_LAT
            return 0
        if p.kind == 'mfma':
            if o.kind == 'mfma' and r in o.cuses: return 0
            return 44
        if p.kind == 'dsr': return DS_LAT
        if p.kind == 'vld': return p.soft or VM_LAT
        if p.kind in ('valu', 'trans', 'perm'):
            if o.kind == 'mfma': return 12 + (4 if p.kind == 'trans' else 0)
            if p.kind == 'trans': return 12
            if o.kind == 'perm': return 12
            return 4
        if p.kind == 'salu':
            if o.kind == 'dma' and r == ('s', 'm0'): return 8
            return 4
        return 4
    def waw_lat(s, p, o):
        if p.kind == 'mfma' and o.kind != 'mfma': return 44
        if p.kind == 'dsr': return DS_LAT
        if p.kind == 'vld': return p.soft or VM_LAT
        return 0
    def war_lat(s, q, o, r):
        if q.kind == 'mfma' and r in q.cuses and o.kind != 'mfma': return 20
        if q.kind in ('vst', 'dsw') and r[0] != 't': return 12
        return 0

    def schedule(s, verbose=False):
        s.build()
        ops = s.ops
        INF = 1 << 60
        mi = 0
        for o in ops:
            o.dl = INF
            if o.kind == 'mfma':
                o.dl = 16 * mi; mi += 1
            elif o.kind in ('vld', 'dma', 'vst', 'bar'):
                o.dl = 16 * mi + ASAP_SLACK
        end = 16 * mi + 2000
        for o in reversed(ops):
            d = o.dl if o.dl != INF else end
            for q, lat in o.succs:
                d = min(d, q.dl - max(lat, COST[o.kind]))
            o.dl = d
        for o in ops:
            o.npred = len(o.preds); o.ready = 0; o.t = None
        import heapq
        avail = [o for o in ops if o.npred == 0]
        out = []
        now = 0; pipe_free = 0
        em = Emitter()
        nleft = len(ops)
        while nleft:
            best = None
            mf = next((o for o in avail if o.kind == 'mfma'), None)
            toks = [o for o in avail if o.kind == 'tok' and o.ready <= now and not em.needs_wait(o)]
            if toks:
                best = toks[0]
            elif mf is not None and mf.ready <= now and pipe_free <= now:
                best = mf
            else:
                tm = max(mf.ready, pipe_free) if mf is not None else INF
                cands = [o for o in avail if o.kind != 'mfma' and o.ready <= now]
                if cands:
                    room = tm - now
                    fit = [o for o in cands if COST[o.kind] + (4 if em.needs_wait(o) else 0) + 4 * em.hazard_nops(o) <= room]
                    if fit:
                        best = min(fit, key=lambda o: (o.dl, o.idx))
                    else:
                        c = min(cands, key=lambda o: (o.dl, o.idx))
                        if mf is None or c.dl <= mf.dl + 32 or room >= 4:
                            best = c
                if best is None:
                    nxt = [o.ready for o in avail if o.ready > now]
                    if mf is not None: nxt.append(tm)
                    now = max(now + 1, min(nxt))
                    continue
            o = best
            avail.remove(o)
            extra = em.emit(o, now)
            now += extra
            o.t = now; o.pos = len(ops) - nleft
            if o.kind == 'mfma':
                pipe_free = now + 16
            now += COST[o.kind]
            nleft -= 1
            for q, lat in o.succs:
                q.ready = max(q.ready, o.t + lat)
                q.npred -= 1
                if q.npred == 0: avail.append(q)
        s.est_cycles = now
        s.em = em
        return em.lines

    def periodize(s):
        import heapq
        ops = s.ops
        iters = {}
        for o in ops:
            if o.it is not None: iters.setdefault(o.it, []).append(o)
        loops = []
        for (lp, i) in iters:
            if lp not in loops: loops.append(lp)
        for o in ops: o.key = None
        shift_points = []
        shift = 0.0
        segs = []
        runs = []
        for lp in loops:
            idxs = sorted(i for (l, i) in iters if l == lp)
            sig = {i: [o.text for o in iters[(lp, i)]] for i in idxs}
            k = 0
            while k < len(idxs):
                j = k
                while j + 1 < len(idxs) and sig[idxs[j + 1]] == sig[idxs[k]] and idxs[j + 1] == idxs[j] + 1: j += 1
                if j - k + 1 >= 3: runs.append((lp, idxs[k], idxs[j]))
                k = j + 1
        runs.sort(key=lambda r: iters[(r[0], r[1])][0].idx)
        cur_shift = 0.0; lastidx = 0
        shifts = []
        for (lp, a, b) in runs:
            m = (a + b) // 2
            def mt(i): return next(o.t for o in iters[(lp, i)] if o.kind == 'mfma')
            Tp = (mt(m + 1) - mt(m - 1)) / 2.0 if m > a else float(mt(m + 1) - mt(m))
            base = mt(a) + cur_shift - (mt(m) + (a - m) * Tp)
            for i in range(a, b + 1):
                for o, om in zip(iters[(lp, i)], iters[(lp, m)]):
                    o.key = om.t + (i - m) * Tp + base + om.pos * 1e-6
            shifts.append((iters[(lp, a)][0].idx, cur_shift))
            cur_shift = (mt(m) + (b - m) * Tp + base) - mt(b)
            shifts.append((iters[(lp, b)][-1].idx + 1, cur_shift))
        for o in ops:
            if o.key is None:
                sh = 0.0
                for (st, v) in shifts:
                    if o.idx >= st: sh = v
                o.key = o.t + sh + o.pos * 1e-6
        for o in ops: o.npred = len(o.preds)
        heap = [(o.key, o.idx, o) for o in ops if o.npred == 0]; heapq.heapify(heap)
        em = Emitter(); now = 0; pipe = 0
        while heap:
            _, _, o = heapq.heappop(heap)
            if o.kind == 'mfma': now = max(now, pipe)
            now += em.emit(o, now)
            o.t = now
            if o.kind == 'mfma': pipe = now + 16
            now += COST[o.kind]
            for q, lat in o.succs:
                q.npred -= 1
                if q.npred == 0: heapq.heappush(heap, (q.key, q.idx, q))
        s.em = em; s.est2 = now
        return em.lines

WAIT_OLD = 200

class Emitter:
    def __init__(s):
        s.lines = []
        s.hist = []
        s.lg = []
        s.vm = []
        s.pend = {}
        s.pendr = defaultdict(list)
        s.nwait = 0; s.nnop = 0
    def _need(s, o):
        lg = None; vm = None
        for r in o.uses + o.cuses + o.defs:
            p = s.pend.get(r)
            if p is None: continue
            if p.kind in ('dsr', 'dsw'):
                if p in s.lg:
                    n = len(s.lg) - 1 - s.lg.index(p)
                    lg = n if lg is None else min(lg, n)
            else:
                if p in s.vm:
                    ix = s.vm.index(p)
                    if p.grp is not None:
                        while ix + 1 < len(s.vm) and s.vm[ix + 1].grp == p.grp: ix += 1
                    n = len(s.vm) - 1 - ix
                    vm = n if vm is None else min(vm, n)
        return lg, vm
    def needs_wait(s, o):
        lg, vm = s._need(o)
        return lg is not None or vm is not None
    def hazard_nops(s, o):
        need = 0
        h = s.hist
        n = len(h)
        ou = set(o.uses); oc = set(o.cuses); od = set(o.defs)
        for d in range(1, min(n, 10) + 1):
            p = h[n - d]
            if p is None: continue
            gap = d - 1
            req = 0
            pd = set(p.defs)
            if p.kind == 'mfma':
                if o.kind == 'mfma':
                    if pd & ou: req = max(req, 8)
                    if pd & oc and set(p.defs) != oc: req = max(req, 6)
                    if (pd & od) and not (pd == oc and pd == od): req = max(req, 6)
                elif o.kind != 'tok':
                    if pd & (ou | od): req = max(req, 8)
                    if o.kind in ('valu', 'trans', 'perm') and set(p.cuses) & od: req = max(req, 3)
            if p.kind in ('valu', 'trans', 'perm'):
                vd = {r for r in pd if r[0] in 'va'}
                sd = {r for r in pd if r[0] == 's'}
                if o.kind == 'mfma' and vd & (ou | oc): req = max(req, 2)
                if p.kind == 'trans' and o.kind in ('valu', 'perm', 'mfma', 'vst', 'dsw') and vd & ou: req = max(req, 1 if o.kind != 'mfma' else 2)
                if o.kind == 'perm' and vd & (ou | od): req = max(req, 2)
                if sd & ou:
                    if o.kind in ('vld', 'vst', 'dma'): req = max(req, 5)
                    elif o.kind in ('valu', 'trans', 'perm'): req = max(req, 2)
                    else: req = max(req, 1)
                if 'readfirstlane' in o.text or 'readlane' in o.text:
                    if vd & ou: req = max(req, 1)
                if 'dpp' in o.text and vd & ou: req = max(req, 2)
            if p.kind == 'salu' and ('s', 'm0') in pd and o.kind == 'dma': req = max(req, 1)
            if p.kind in ('vst', 'dsw') and o.kind not in ('tok', 'bar', 'salu'):
                if p.kind == 'vst' and {r for r in p.uses if r[0] in 'va'} & od: req = max(req, 2)
            need = max(need, req - gap)
        return need
    def emit(s, o, now):
        extra = 0
        lg, vm = s._need(o)
        if lg is not None or vm is not None:
            parts = []
            if vm is not None:
                vm = min(vm, 62)
                parts.append(f"vmcnt({vm})")
                done = s.vm[:len(s.vm) - vm]; s.vm = s.vm[len(s.vm) - vm:]
                s._retire(done)
            if lg is not None:
                k = sum(1 for p in s.lg if p.t > now - WAIT_OLD)
                lg = min(lg, k, 14)
                parts.append(f"lgkmcnt({lg})")
                done = s.lg[:len(s.lg) - lg]; s.lg = s.lg[len(s.lg) - lg:]
                s._retire(done)
            s.lines.append(("s_waitcnt " + " ".join(parts), None)); s.hist.append(None); extra += 4; s.nwait += 1
        if o.kind == 'tok':
            return extra
        n = s.hazard_nops(o)
        if n > 0:
            s.lines.append((f"s_nop {n-1}", None)); s.hist += [None] * n; extra += 4 * n; s.nnop += n
        s.lines.append((o.text, o)); s.hist.append(o)
        o.t = now + extra
        if o.kind in ('dsr', 'dsw'):
            s.lg.append(o)
            for r in o.defs: s.pend[r] = o
        elif o.kind in ('vld', 'vst', 'dma'):
            s.vm.append(o)
            for r in o.defs: s.pend[r] = o
        else:
            for r in o.defs: s.pend.pop(r, None)
        return extra
    def _retire(s, done):
        for p in done:
            for r in p.defs:
                if s.pend.get(r) is p: del s.pend[r]
    def drain_text(s):
        return "s_waitcnt vmcnt(0) lgkmcnt(0)"


def norm(w):
    return [("s_waitcnt" if t.startswith("s_waitcnt") else t) for t in w]
def merge(ws):
    out = []
    for ts in zip(*ws):
        if ts[0].startswith("s_waitcnt"):
            vm = [int(m.group(1)) for t in ts for m in [re.search(r"vmcnt\((\d+)\)", t)] if m]
            lg = [int(m.group(1)) for t in ts for m in [re.search(r"lgkmcnt\((\d+)\)", t)] if m]
            out.append("s_waitcnt" + (f" vmcnt({min(vm)})" if vm else "") + (f" lgkmcnt({min(lg)})" if lg else ""))
        else: out.append(ts[0])
    return out

def reroll(lines, prefix, cnt_sgpr, log=None):
    wins = []; cur = (None, [])
    for t, o in lines:
        if o is not None and o.mark is not None:
            wins.append(cur); cur = (o.mark, [])
        cur[1].append(t)
    wins.append(cur)
    out = []; i = 0; nl = 0
    while i < len(wins):
        m, w = wins[i]
        j = i + 1
        while m is not None and j < len(wins) and wins[j][0] == m and norm(wins[j][1]) == norm(w): j += 1
        c = j - i
        if c >= 2:
            w = merge([wins[k][1] for k in range(i, j)])
            lab = f"{prefix}_L{nl}"; nl += 1
            out.append(f"s_mov_b32 s{cnt_sgpr}, {c}")
            out.append(f"{lab}:")
            out += w
            out += [f"s_sub_u32 s{cnt_sgpr}, s{cnt_sgpr}, 1", f"s_cmp_lg_u32 s{cnt_sgpr}, 0", f"s_cbranch_scc1 {lab}"]
        else:
            out += w
        if log is not None: log.append((m, len(w), c))
        i = j
    return out
```

```python
import sys, math, struct
import sched
from sched import *

SCALE = math.log2(math.e) * (128 ** -0.5)
TBIAS = 20.0
def f32(x): return "0x%08x" % struct.unpack("<I", struct.pack("<f", x))[0]
ARGS = sys.argv[1:]
def opt(name, default):
    for a in ARGS:
        if a.startswith(f"--{name}="): return type(default)(a.split("=")[1])
    return default
STAMP = "--stamp" in ARGS
NOROLL = "--noroll" in ARGS
POL_W = opt("polw", "nt"); POL_WO = opt("polwo", "nt"); POL_ST = opt("polst", ""); POL_K2 = opt("polk2", "")
def pol(p): return (" " + p.replace("+", " ")) if p else ""
sched.COST['dsr'] = opt("cdsr", 4)
sched.COST['dsw'] = opt("cdsw", 8)
sched.VM_GAP = opt("vmgap", 40)
sched.DS_LAT = opt("dslat", 140)
PF = opt("pf", 4)
sched.DS_GAPS = [int(x) for x in opt("dsgaps", "16,8,40").split(",")]
TOUCH = opt("touch", 1)
KVT = opt("kvt", 7)
XM = opt("xm", 1)

WS_O = 0
WS_WO = 32 << 20
LDS_ST = 32768
LDS_XCH = 65536
LDS_WO = 131072

sX, sK, sVv, sWQ, sWO, sWS = 8, 12, 16, 20, 24, 28
sW = 36; sG1 = 37; sKm0 = 38; sVm0 = 39; sG2 = 40; sCnt = 41; sOdd = 42
sOb = 44; sWoS = 45; sWoD = 46; sWoM = 47; sScale = 48; sT3 = 50; sT4 = 51
sWqM = 52; sXM = 53; sT5 = 54; sT6 = 55; sWoN = 61; sGend = 32

vLane = 1; vKrd = 2; vVrd = [3, 4]; vKsrc = 5; vVsrc = 6; vLin = 7
vWqSrc = [8, 9, 10, 11]; vWqRd = [13, 14]; vXsrc = [15, 16, 17]; vXrd = 18
vXchW = 21; vXchR = 22; vTw = 12; vTx = 23; vTkv = 0
sKV = 64
vTmp = [24, 25, 26, 27, 28, 29, 30, 31]
vWoSrc = [19, 20]; vWoRd = [8, 9, 10, 11, 12]
M0 = [('s', 'm0')]
def srd(n): return f"s[{n}:{n+3}]"

class K1Role:
    def __init__(s, role):
        s.role = role; s.p = Prog(); s.ntok = 0; s.mark = None
        if role == 'A':
            s.t1 = [0, 1, 2]; s.t2 = [0, 1]; s.myhd = 0; s.xl = [0, 1, 2]
        else:
            s.t1 = [3, 4]; s.t2 = [2, 3, 4]; s.myhd = 1; s.xl = [3, 4]
    def tok(s, name):
        s.ntok += 1; return ('t', f"{name}#{s.ntok}")
    def add(s, *a, **k): return s.p.add(*a, **k)
    def stamp(s, uses=()):
        if not STAMP: return
        i = getattr(s, 'nstamp', 1); s.nstamp = i + 1
        assert i < 8
        s.add(f"s_memtime s[{82+2*i}:{83+2*i}]", 'bar', defs=S(82 + 2 * i, 2), uses=list(uses))
    def mfma(s, d, a, b, c):
        cs = rs(c[0], c[1], 4) if c else "0"
        o = s.add(f"v_mfma_f32_16x16x32_bf16 {rs(d[0],d[1],4)}, {rs(a[0],a[1],4)}, {rs(b[0],b[1],4)}, {cs}", 'mfma',
              defs=R(d[0], d[1], 4), uses=R(a[0], a[1], 4) + R(b[0], b[1], 4), cuses=R(c[0], c[1], 4) if c else [])
        if s.mark is not None: o.mark = s.mark; s.mark = None

    def kv_fetch(s, n, eu=()):
        if s.role != 'B': return []
        assert n == s.nfetch; s.nfetch += 1
        eu = list(eu); odd = n & 1
        t = None
        for (m0b, sr, vs, o2, base) in ((sKm0, sK, vKsrc, 1024, 0), (sVm0, sVv, vVsrc, 2048, 0)):
            for hi in (0, 1):
                s.add(f"s_add_u32 m0, s{m0b}, {odd*8192 + hi*4096}", 'salu', defs=M0, uses=S(m0b) + eu)
                so = sG2 if hi else sG1
                for off in (0, o2):
                    offs = f" offset:{off}" if off else ""
                    t = s.tok("dma")
                    s.add(f"buffer_load_dwordx4 v{vs}, {srd(sr)}, s{so} offen{offs} nt lds", 'dma', defs=[t], uses=V(vs) + S(so) + M0 + eu)
        s.add(f"s_add_u32 s{sG1}, s{sG1}, 8192\ns_cmp_lt_u32 s{sG1}, s{sGend}\ns_cselect_b32 s{sG1}, s{sG1}, 0x7ff00000", 'salu', defs=S(sG1), uses=S(sG1) + S(sGend))
        s.add(f"s_add_u32 s{sG2}, s{sG1}, 4096", 'salu', defs=S(sG2), uses=S(sG1))
        if odd:
            for r in (sKm0, sVm0):
                s.add(f"s_add_u32 s{r}, s{r}, 32768", 'salu', defs=S(r), uses=S(r))
                s.add(f"s_and_b32 s{r}, s{r}, 0x1ffff", 'salu', defs=S(r), uses=S(r))
        return [t]

    def phase0(s):
        aXF = 0; aWF = 40; NWF = 8
        acc0 = 32
        def acc(ti, u, t): return acc0 + ti * 32 + (u * 2 + t) * 4
        def stage_dma(k, free):
            if k >= 20: return []
            o = (k & 1) * 32768
            t = None
            for i in range(4):
                s.add(f"s_add_u32 m0, s{sWqM}, {o + (i>>1)*8192 + (i&1)*1024}", 'salu', defs=M0, uses=S(sWqM) + free)
                t = s.tok("wqd")
                s.add(f"buffer_load_dwordx4 v{vWqSrc[i]}, {srd(sWQ)}, s{sT3} offen{pol(POL_W)} lds", 'dma', defs=[t], uses=V(vWqSrc[i]) + S(sT3) + M0 + free)
            for i, xt in enumerate(s.xl):
                s.add(f"s_add_u32 m0, s{sXM}, {o + xt*1024}", 'salu', defs=M0, uses=S(sXM) + free)
                t = s.tok("xd")
                s.add(f"buffer_load_dwordx4 v{vXsrc[i]}, {srd(sX)}, s{sT4} offen{pol(POL_W)} lds", 'dma', defs=[t], uses=V(vXsrc[i]) + S(sT4) + M0 + free)
            s.add(f"s_add_u32 s{sT3}, s{sT3}, 262144", 'salu', defs=S(sT3), uses=S(sT3))
            s.add(f"s_add_u32 s{sT4}, s{sT4}, 64", 'salu', defs=S(sT4), uses=S(sT4))
            if k & 1:
                for r in (sWqM, sXM): s.add(f"s_xor_b32 s{r}, s{r}, 0x10000", 'salu', defs=S(r), uses=S(r))
            return [t]
        land = {}
        for k in range(3): land[k] = stage_dma(k, [])
        s.dma_tok = {}
        if s.role == 'B' and TOUCH:
            for n in range(7):
                if n in (1, 4):
                    s.add(f"buffer_load_dword a200, v{vTx}, {srd(sX)}, 0 offen{pol(POL_W)}", 'vld', uses=V(vTx), soft=1)
                    s.add(f"v_add_u32 v{vTx}, 8192, v{vTx}", 'valu', defs=V(vTx), uses=V(vTx))
                else:
                    s.add(f"buffer_load_dword a200, v{vTw}, {srd(sWQ)}, 0 offen{pol(POL_W)}", 'vld', uses=V(vTw), soft=1)
                    s.add(f"v_add_u32 v{vTw}, {128*8192}, v{vTw}", 'valu', defs=V(vTw), uses=V(vTw))
        rdy = {}; lastrd = {}
        def bar(k):
            r = s.tok("rdy")
            s.add("s_barrier", 'bar', defs=[r], uses=land.get(k, []) + lastrd.get(k - 2, []))
            rdy[k] = r
            if k >= 1: land[k + 2] = stage_dma(k + 2, [r])
            if s.role == 'B' and (k & 1) == 0 and 2 <= k < 2 + 2 * KVT:
                s.add(f"buffer_load_dword a200, v{vTkv}, {srd(sKV)}, 0 offen nt", 'vld', uses=V(vTkv) + [r], soft=1)
                s.add(f"v_add_u32 v{vTkv}, 8192, v{vTkv}", 'valu', defs=V(vTkv), uses=V(vTkv))
            if k == 17:
                for n in (0, 1): s.dma_tok[n] = s.kv_fetch(n, [r])
            if k == 18:
                for n in (2, 3): s.dma_tok[n] = s.kv_fetch(n, [r])
        def x_reads(k):
            for ti in range(5):
                r = aXF + (k & 1) * 20 + ti * 4
                s.add(f"ds_read_b128 {rs('a',r,4)}, v{vXrd} offset:{(k&1)*32768 + ti*1024}", 'dsr', defs=A(r, 4), uses=V(vXrd) + [rdy[k]])
            if k & 1: s.add(f"v_xor_b32 v{vXrd}, 0x10000, v{vXrd}", 'valu', defs=V(vXrd), uses=V(vXrd))
        bar(0); s.stamp([rdy[0]])
        x_reads(0)
        nfrag = 0
        order = [3, 4, 0, 1, 2] if s.role == 'A' else [0, 1, 2, 3, 4]
        for k in range(20):
            if (k & 1) == 0: s.mark = 'q'; s.p.iter('q', k >> 1)
            for f in range(8):
                u, t = f >> 1, f & 1
                r = aWF + (nfrag % NWF) * 4; nfrag += 1
                for half in range(2):
                    tk = s.tok("wr")
                    s.add(f"ds_read_b64_tr_b16 {rs('a',r+2*half,2)}, v{vWqRd[t]} offset:{(k&1)*32768 + half*1024 + u*256}", 'dsr', defs=A(r + 2 * half, 2) + [tk], uses=V(vWqRd[t]) + [rdy[k]])
                    lastrd[k] = [tk]
                if (k & 1) and u == 3:
                    s.add(f"v_xor_b32 v{vWqRd[t]}, 0x10000, v{vWqRd[t]}", 'valu', defs=V(vWqRd[t]), uses=V(vWqRd[t]))
                for ti in order:
                    d = acc(ti, u, t)
                    s.mfma(('v', d), ('a', r), ('a', aXF + (k & 1) * 20 + ti * 4), ('v', d) if k else None)
                if f == 1 and k + 1 < 20: bar(k + 1)
                if f == 3 and k + 1 < 20: x_reads(k + 1)
        s.p.iter(None, 0)
        s.p0_last = lastrd[19]
        keep = s.t1 if s.myhd == 0 else s.t2
        give = [t for t in range(5) if t not in keep]
        s.Q = {}
        qslots = [192, 208, 224, 240, 176]
        recv = s.t2 if s.myhd == 0 else s.t1
        for i, t in enumerate(keep): s.Q[(s.myhd, t)] = qslots[i]
        for i, t in enumerate(recv): s.Q[(1 - s.myhd, t)] = qslots[3 + i]
        xw = []; nt = 0
        for ti in give + keep:
            for u in range(4):
                t0 = acc(ti, u, 0); t1 = acc(ti, u, 1)
                for base in (t0, t1):
                    for e in (0, 2):
                        s.add(f"v_pk_mul_f32 v[{base+e}:{base+e+1}], v[{base+e}:{base+e+1}], s[{sScale}:{sScale+1}]", 'valu', defs=V(base + e, 2), uses=V(base + e, 2) + S(sScale, 2))
                tm = vTmp[(nt & 1) * 4:(nt & 1) * 4 + 4]; nt += 1
                for i, src in enumerate((t0, t0 + 2, t1, t1 + 2)):
                    s.add(f"v_cvt_pk_bf16_f32 v{tm[i]}, v{src}, v{src+1}", 'valu', defs=V(tm[i]), uses=V(src, 2))
                q = s.Q[(s.myhd, ti)] + u * 4 if ti in keep else t0
                for i in range(4):
                    s.add(f"v_cndmask_b32 v{q+i}, v{tm[i]}, v{tm[i^2]}, s[{sOdd}:{sOdd+1}]", 'valu', defs=V(q + i), uses=V(tm[i]) + V(tm[i ^ 2]) + S(sOdd, 2))
                if ti in give:
                    tk = s.tok("xw")
                    s.add(f"ds_write_b128 v{vXchW}, v[{q}:{q+3}] offset:{(give.index(ti)*4+u)*1024}", 'dsw', defs=[tk], uses=V(vXchW) + V(q, 4) + [rdy[19]])
                    xw = [tk]
        s.xw = xw; s.recv = recv

    def recv_q(s, rdy):
        for i, t in enumerate(s.recv):
            for u in range(4):
                q = s.Q[(1 - s.myhd, t)] + u * 4
                tk = s.tok("xr")
                s.add(f"ds_read_b128 v[{q}:{q+3}], v{vXchR} offset:{(i*4+u)*1024}", 'dsr', defs=V(q, 4) + [tk], uses=V(vXchR) + [rdy])
        return tk

    def barrier(s, g):
        if g >= 32: return None
        rdy = s.tok("kvrdy")
        uses = list(s.dma_tok.get(g, []))[-1:] + s.bar_extra
        s.bar_extra = []
        if (g - 2) in s.tile_last_rd: uses.append(s.tile_last_rd[g - 2])
        s.add("s_barrier", 'bar', defs=[rdy], uses=uses)
        s.rdys[g] = rdy
        if g in (0, 17): s.stamp([rdy])
        if g == 1:
            for n in (4, 5, 6, 7): s.dma_tok[n] = s.kv_fetch(n, [rdy])
        if g >= 2 and g + 6 < 37:
            s.dma_tok[g + 6] = s.kv_fetch(g + 6, [rdy])
        return rdy

    def attention(s, hd):
        tiles = s.t1 if hd == 0 else s.t2
        n = len(tiles)
        aKF = 0; aVF = 32; aVF2 = 64; aOnes = 252
        vO = 32; vL = vO + 96; vS = vL + 12; vP = vS + 16; vN = vP + 8
        def O(i, t): return vO + i * 32 + t * 4
        def adv(r):
            s.add(f"v_add_u32 v{r}, 0x8000, v{r}", 'valu', defs=V(r), uses=V(r))
            s.add(f"v_and_b32 v{r}, 0x1ffff, v{r}", 'valu', defs=V(r), uses=V(r))
        def k_reads(st):
            g = hd * 16 + st
            for tau in range(2):
                for u in range(4):
                    r = aKF + (tau * 4 + u) * 4; tk = s.tok("kr")
                    s.add(f"ds_read_b128 {rs('a',r,4)}, v{vKrd} offset:{(g&1)*8192 + tau*4096 + u*256}", 'dsr', defs=A(r, 4) + [tk], uses=V(vKrd) + [s.rdys[g]])
                    s.tile_last_rd[g] = tk
            if g & 1: adv(vKrd)
        def vreg(st, t):
            if t >= 4 and (st & 1): return aVF2 + (t - 4) * 4
            return aVF + t * 4
        def v_reads(st, ts, last):
            g = hd * 16 + st
            for t in ts:
                r = vreg(st, t)
                for half in range(2):
                    tk = s.tok("vr")
                    s.add(f"ds_read_b64_tr_b16 {rs('a',r+2*half,2)}, v{vVrd[t&1]} offset:{16384 + (g&1)*8192 + half*4096 + (t>>1)*256}", 'dsr', defs=A(r + 2 * half, 2) + [tk], uses=V(vVrd[t & 1]) + [s.rdys[g]])
                    s.tile_last_rd[g] = tk
            if last and (g & 1): adv(vVrd[0]); adv(vVrd[1])
        def qk(i, sb, use_negm=True):
            q = s.Q[(hd, tiles[i])]
            for tau in range(2):
                d = vS + sb * 8 + tau * 4
                for u in range(4):
                    c = ('v', d) if u else (('v', vN + i * 4) if use_negm else None)
                    s.mfma(('v', d), ('a', aKF + (tau * 4 + u) * 4), ('v', q + u * 4), c)
        def sm(sb):
            for e in range(8):
                r = vS + sb * 8 + e
                s.add(f"v_exp_f32 v{r}, v{r}", 'trans', defs=V(r), uses=V(r))
                if e & 1:
                    s.add(f"v_cvt_pk_bf16_f32 v{vP+sb*4+(e>>1)}, v{r-1}, v{r}", 'valu', defs=V(vP + sb * 4 + (e >> 1)), uses=V(r - 1, 2))
        def pv(st, i, sb):
            for t in range(8):
                d = O(i, t)
                s.mfma(('v', d), ('a', vreg(st, t)), ('v', vP + sb * 4), ('v', d) if st else None)
            d = vL + i * 4
            s.mfma(('v', d), ('a', aOnes), ('v', vP + sb * 4), ('v', d) if st else None)
        if hd == 0:
            r0 = s.barrier(0)
            s.bar_extra = [s.recv_q(r0)]
            s.after_p0_barrier(r0)
        s.mark = ('pro', hd)
        k_reads(0); v_reads(0, range(8), True)
        sb = 0
        for i in range(n):
            qk(i, sb, use_negm=False)
            b = vS + sb * 8
            m = vTmp[0 + 2 * (i & 1)]; t = vTmp[1 + 2 * (i & 1)]
            s.add(f"v_max3_f32 v{m}, v{b}, v{b+1}, v{b+2}", 'valu', defs=V(m), uses=V(b, 3))
            s.add(f"v_max3_f32 v{m}, v{m}, v{b+3}, v{b+4}", 'valu', defs=V(m), uses=V(m) + V(b + 3, 2))
            s.add(f"v_max3_f32 v{m}, v{m}, v{b+5}, v{b+6}", 'valu', defs=V(m), uses=V(m) + V(b + 5, 2))
            s.add(f"v_max_f32 v{m}, v{m}, v{b+7}", 'valu', defs=V(m), uses=V(m) + V(b + 7))
            for pl in ("v_permlane32_swap_b32", "v_permlane16_swap_b32"):
                s.add(f"v_mov_b32 v{t}, v{m}", 'valu', defs=V(t), uses=V(m))
                s.add(f"{pl} v{m}, v{t}", 'perm', defs=V(m) + V(t), uses=V(m) + V(t))
                s.add(f"v_max_f32 v{m}, v{m}, v{t}", 'valu', defs=V(m), uses=V(m) + V(t))
            for e in range(4):
                s.add(f"v_sub_f32 v{vN+i*4+e}, {f32(-TBIAS)}, v{m}", 'valu', defs=V(vN + i * 4 + e), uses=V(m))
            sb ^= 1
        seq = [(st, i) for st in range(16) for i in range(n)]
        qk(0, sb)
        for k, (st, i) in enumerate(seq):
            cur = sb
            if i == 0:
                s.barrier(hd * 16 + st + 1)
                if st + 1 < 16: v_reads(st + 1, range(4, 8), False)
                s.step_hook(hd, st)
            sm(cur)
            nxt = seq[k + 1] if k + 1 < len(seq) else None
            if nxt:
                nst, ni = nxt
                if ni == 0:
                    if (nst & 1) == 1: s.mark = ('att', hd); s.p.iter(('att', hd), nst >> 1)
                    k_reads(nst)
                sb ^= 1
                qk(ni, sb)
            pv(st, i, cur)
            if nxt and nxt[1] == 0: v_reads(nxt[0], range(0, 4), True)
        s.p.iter(None, 0)
        if hd == 1: s.stamp(V(vL + (n - 1) * 4))
        for i in range(n):
            l = vL + i * 4
            s.add(f"v_rcp_f32 v{l}, v{l}", 'trans', defs=V(l), uses=V(l))
            s.add(f"v_mov_b32 v{l+1}, v{l}", 'valu', defs=V(l + 1), uses=V(l))
            s.add(f"s_add_u32 s{sT4}, s{sOb}, {hd*20480 + tiles[i]*1024}", 'salu', defs=S(sT4), uses=S(sOb) + V(l))
            for u in range(4):
                b = O(i, 2 * u)
                for e in range(0, 8, 2):
                    s.add(f"v_pk_mul_f32 v[{b+e}:{b+e+1}], v[{b+e}:{b+e+1}], v[{l}:{l+1}]", 'valu', defs=V(b + e, 2), uses=V(b + e, 2) + V(l, 2))
                for e in range(4):
                    s.add(f"v_cvt_pk_bf16_f32 v{b+e}, v{b+2*e}, v{b+2*e+1}", 'valu', defs=V(b + e), uses=V(b + 2 * e, 2))
                if u: s.add(f"s_add_u32 s{sT4}, s{sT4}, 5120", 'salu', defs=S(sT4), uses=S(sT4))
                s.add(f"buffer_store_dwordx4 v[{b}:{b+3}], v{vLin}, {srd(sWS)}, s{sT4} offen{pol(POL_ST)}", 'vst', uses=V(b, 4) + V(vLin) + S(sT4))

    def after_p0_barrier(s, rdy):
        s.wo_rdy = rdy
        if s.role != 'B': return
        a = s.add
        t0, t1 = vTmp[4], vTmp[5]
        for ct in range(5):
            a(f"v_cndmask_b32 v{vWoRd[ct]}, v{vVrd[ct&1]}, v{vVrd[(ct+1)&1]}, s[62:63]", 'valu', defs=V(vWoRd[ct]), uses=V(vVrd[0]) + V(vVrd[1]) + S(62, 2) + [rdy])
            a(f"v_add_u32 v{vWoRd[ct]}, s{56+ct}, v{vWoRd[ct]}", 'valu', defs=V(vWoRd[ct]), uses=V(vWoRd[ct]) + S(56 + ct))
        s.wo_tok = {}; s.wo_free = []
    def wo_job(s, z):
        aW = 80
        if True:
            s.add(f"s_sub_u32 s{sT6}, s{sWoN}, 2\ns_cmp_lt_u32 s{sT6}, 4\ns_cselect_b32 s{sT5}, s{sWoD}, 0x7ff00000", 'salu', defs=S(sT5) + S(sT6), uses=S(sWoD) + S(sWoN))
            dep = [s.wo_tok[z - 2]] if (z - 2) in s.wo_tok else [s.wo_rdy]
            for ct in range(5):
                r = aW + ct * 4
                for half in range(2):
                    tk = s.tok("wor")
                    s.add(f"ds_read_b64_tr_b16 {rs('a',r+2*half,2)}, v{vWoRd[ct]} offset:{half*4096}", 'dsr', defs=A(r + 2 * half, 2) + [tk], uses=V(vWoRd[ct]) + dep)
                s.add(f"v_xor_b32 v{vWoRd[ct]}, 0x2000, v{vWoRd[ct]}", 'valu', defs=V(vWoRd[ct]), uses=V(vWoRd[ct]))
            free = [tk]
            for ct in range(5):
                r = aW + ct * 4
                if ct == 4: s.add(f"s_add_u32 s{sT5}, s{sT5}, 4096", 'salu', defs=S(sT5), uses=S(sT5))
                off = ct * 1024 if ct < 4 else 0
                s.add(f"buffer_store_dwordx4 {rs('a',r,4)}, v{vLin}, {srd(sWS)}, s{sT5} offen" + (f" offset:{off}" if off else "") + pol(POL_ST), 'vst', uses=A(r, 4) + V(vLin) + S(sT5))
            s.add(f"s_add_u32 s{sWoD}, s{sWoD}, 5120", 'salu', defs=S(sWoD), uses=S(sWoD))
        s.add(f"s_cmp_lt_u32 s{sWoN}, 4\ns_cselect_b32 s{sT3}, s{sWoS}, 0x7ff00000", 'salu', defs=S(sT3), uses=S(sWoS) + S(sWoN))
        for rho in range(8):
            if rho and (rho & 1) == 0:
                s.add(f"s_add_u32 s{sT3}, s{sT3}, 10240", 'salu', defs=S(sT3), uses=S(sT3))
            s.add(f"s_add_u32 m0, s{sWoM}, {rho*1024}", 'salu', defs=M0, uses=S(sWoM))
            t = s.tok("wod")
            s.add(f"buffer_load_dwordx4 v{vWoSrc[rho&1]}, {srd(sWO)}, s{sT3} offen{pol(POL_WO)} lds", 'dma', defs=[t], uses=V(vWoSrc[rho & 1]) + S(sT3) + M0 + free)
        s.wo_tok[z] = t
        s.add(f"s_xor_b32 s{sWoM}, s{sWoM}, 0x2000", 'salu', defs=S(sWoM), uses=S(sWoM))
        s.add(f"s_add_u32 s{sWoS}, s{sWoS}, 40960", 'salu', defs=S(sWoS), uses=S(sWoS))
        s.add(f"s_add_u32 s{sWoN}, s{sWoN}, 1", 'salu', defs=S(sWoN), uses=S(sWoN))
    def step_hook(s, hd, st):
        if s.role != 'B' or hd != 0: return
        if st & 1 and st <= 13: s.wo_job(st >> 1)

    def gen(s):
        s.bar_extra = []; s.rdys = {}; s.tile_last_rd = {}; s.nfetch = 0
        s.phase0()
        s.bar_extra = s.p0_last + s.xw
        s.attention(0)
        s.attention(1)
        lines = s.p.schedule()
        if not NOROLL: lines = s.p.periodize()
        log = []
        L = [t for t, _ in lines] if NOROLL else reroll(lines, "K1" + s.role, sCnt, log)
        print(f"role {s.role}: ops {len(s.p.ops)} est {s.p.est_cycles} waits {s.p.em.nwait} nops {s.p.em.nnop} lines {len(L)} windows {[(str(m), n, c) for m, n, c in log]}", file=sys.stderr)
        if STAMP:
            i = s.nstamp
            L += ["s_waitcnt vmcnt(0)", f"s_memtime s[{82+2*i}:{83+2*i}]", "s_memrealtime s[76:77]", "s_waitcnt lgkmcnt(0)"]
            L += [f"s_lshl_b32 s80, s2, 2", f"s_add_u32 s80, s80, s{sW}", "s_lshl_b32 s80, s80, 6", f"s_add_u32 s80, s80, {64<<20}", "v_mov_b32 v24, 0"]
            for k in range(i + 1):
                L += [f"v_mov_b32 v25, s{82+2*k}", f"buffer_store_dword v25, v24, {srd(sWS)}, s80 offen offset:{4*k}"]
            L += [f"v_mov_b32 v25, s100", f"buffer_store_dword v25, v24, {srd(sWS)}, s80 offen offset:56", f"v_mov_b32 v25, s76", f"buffer_store_dword v25, v24, {srd(sWS)}, s80 offen offset:60"]
        return L

def k1_prologue():
    L = []; a = L.append
    a("s_cmp_ge_u32 s2, 256"); a("s_cbranch_scc1 K1_end")
    a("s_and_b32 s3, s2, 7"); a("s_lshr_b32 s4, s3, 2"); a("s_mul_i32 s5, s4, 40")
    a("s_add_u32 s6, s0, s5"); a("s_addc_u32 s7, s1, 0")
    a("s_load_dwordx8 s[64:71], s[6:7], 0"); a("s_load_dwordx2 s[72:73], s[6:7], 32"); a("s_load_dwordx2 s[74:75], s[0:1], 96")
    a(f"v_and_b32 v{vLane}, 63, v0"); a("v_lshrrev_b32 v24, 6, v0"); a("s_lshr_b32 s5, s2, 3")
    a(f"v_readfirstlane_b32 s{sW}, v24")
    if PF:
        a("s_getpc_b64 s[80:81]")
        a(f"s_mul_hi_u32 s78, s5, {(1<<32)//11+1}"); a("s_mul_i32 s78, s78, 11"); a("s_sub_u32 s78, s5, s78")
        a(f"s_lshl_b32 s78, s78, 12")
        a("v_lshlrev_b32 v25, 4, v0"); a("v_add_u32 v25, s78, v25")
        a(f"global_load_dwordx4 a[0:3], v25, s[80:81]")
    if XM == 0:
        a("s_and_b32 s76, s3, 3"); a("s_lshl_b32 s76, s76, 2"); a("s_and_b32 s77, s5, 3"); a("s_add_u32 s76, s76, s77")
        a("s_lshr_b32 s77, s5, 2")
    else:
        a("s_and_b32 s76, s3, 1"); a("s_lshl_b32 s76, s76, 3"); a("s_and_b32 s77, s5, 7"); a("s_add_u32 s76, s76, s77")
        a("s_bfe_u32 s77, s3, 0x10001"); a("s_lshl_b32 s77, s77, 2"); a("s_lshr_b32 s80, s5, 3"); a("s_add_u32 s77, s77, s80")
    a("s_lshl_b32 s76, s76, 1")
    a(f"s_and_b32 s78, s{sW}, 1"); a(f"s_lshr_b32 s79, s{sW}, 1")
    a(f"s_lshl_b32 s{sG1}, s77, 5"); a(f"s_add_u32 s{sG1}, s{sG1}, s76"); a(f"s_lshl_b32 s{sG1}, s{sG1}, 17"); a(f"s_add_u32 s{sG2}, s{sG1}, 4096"); a(f"s_add_u32 s{sGend}, s{sG1}, 262144")
    a(f"s_lshl_b32 s{sKm0}, s78, 11")
    a(f"s_lshl_b32 s{sVm0}, s78, 10"); a(f"s_add_u32 s{sVm0}, s{sVm0}, 16384")
    a(f"s_mov_b32 s{sOdd}, 0xffff0000"); a(f"s_mov_b32 s{sOdd+1}, 0xffff0000")
    a(f"s_mov_b32 s{sScale}, {f32(SCALE)}"); a(f"s_mov_b32 s{sScale+1}, {f32(SCALE)}")
    a(f"s_mov_b32 s{sT3}, 0"); a(f"s_mov_b32 s{sT4}, 0"); a(f"s_mov_b32 s{sWoN}, 0")
    a("s_lshl_b32 s80, s4, 4"); a("s_lshl_b32 s81, s77, 1"); a("s_add_u32 s80, s80, s81"); a("s_add_u32 s80, s80, s78")
    a("s_lshl_b32 s80, s80, 5"); a("s_add_u32 s80, s80, s76"); a(f"s_mul_i32 s{sOb}, s80, 20480")
    a("s_add_u32 s80, s78, s76")
    a(f"s_mul_i32 s{sWoS}, s80, {128*1280}"); a("s_mul_i32 s81, s77, 160"); a("s_and_b32 s81, s81, 0xffffffc0"); a(f"s_add_u32 s{sWoS}, s{sWoS}, s81")
    a("s_lshl_b32 s81, s4, 3"); a("s_add_u32 s81, s81, s77"); a("s_lshl_b32 s81, s81, 5"); a("s_add_u32 s81, s81, s80"); a(f"s_mul_i32 s{sWoD}, s81, 20480"); a(f"s_add_u32 s{sWoD}, s{sWoD}, {WS_WO - 2*5120}")
    a(f"s_lshl_b32 s{sWoM}, s78, 14"); a(f"s_add_u32 s{sWoM}, s{sWoM}, {LDS_WO}")
    a("s_and_b32 s81, s77, 1"); a("s_cmp_eq_u32 s81, 1")
    a("s_cselect_b64 s[62:63], -1, 0"); a("s_cselect_b32 s81, 256, 0")
    for ct in range(5):
        a(f"s_add_u32 s{56+ct}, s{sWoM}, {(ct>>1)*256}")
        if ct & 1: a(f"s_add_u32 s{56+ct}, s{56+ct}, s81")
    a(f"s_lshl_b32 s{sWqM}, s{sW}, 11"); a(f"s_add_u32 s{sWqM}, s{sWqM}, {LDS_ST}")
    a(f"s_mul_i32 s{sXM}, s78, 5120"); a(f"s_add_u32 s{sXM}, s{sXM}, {LDS_ST + 16384}")
    l = vLane
    a(f"v_lshlrev_b32 v{vLin}, 4, v{l}")
    a(f"v_lshrrev_b32 v24, 4, v{l}"); a(f"v_bfe_u32 v25, v{l}, 2, 2"); a(f"v_and_b32 v26, 3, v{l}"); a(f"v_and_b32 v27, 15, v{l}")
    a("v_lshrrev_b32 v28, 3, v27"); a("v_lshlrev_b32 v28, 1, v28"); a("v_xor_b32 v28, v28, v24"); a("v_lshlrev_b32 v28, 4, v28")
    a(f"v_lshl_add_u32 v{vKrd}, v25, 10, v28"); a(f"v_lshl_add_u32 v{vKrd}, v26, 6, v{vKrd}")
    a(f"v_lshl_add_u32 v{vXrd}, v27, 6, v28"); a(f"v_add_u32 v{vXrd}, s{sXM}, v{vXrd}")
    a("v_lshlrev_b32 v28, 10, v24"); a("v_lshl_add_u32 v28, v25, 6, v28"); a("v_lshl_add_u32 v28, v26, 3, v28")
    a("v_and_b32 v29, 1, v24"); a(f"v_lshl_add_u32 v{vVrd[0]}, v29, 5, v28"); a("v_xor_b32 v29, 1, v29"); a(f"v_lshl_add_u32 v{vVrd[1]}, v29, 5, v28")
    a("s_lshl_b32 s80, s78, 1"); a("v_xor_b32 v28, s80, v26"); a("v_lshlrev_b32 v28, 4, v28"); a("v_lshl_add_u32 v28, v24, 6, v28"); a("v_lshl_add_u32 v28, v25, 8, v28")
    a(f"v_add_u32 v{vKsrc}, s{sKm0}, v28"); a("s_lshl_b32 s80, s78, 10"); a(f"v_add_u32 v{vVsrc}, s80, v28")
    a("v_xor_b32 v28, s78, v26"); a("v_lshlrev_b32 v28, 4, v28"); a("v_lshl_add_u32 v28, v24, 6, v28"); a("v_lshl_add_u32 v28, v25, 13, v28")
    a(f"s_lshl_b32 s80, s{sW}, 16"); a("s_lshl_b32 s81, s76, 8"); a("s_add_u32 s80, s80, s81")
    a(f"v_add_u32 v{vWqSrc[0]}, s80, v28"); a(f"v_add_u32 v{vWqSrc[1]}, 32768, v{vWqSrc[0]}"); a(f"v_add_u32 v{vWqSrc[2]}, 256, v{vWqSrc[0]}"); a(f"v_add_u32 v{vWqSrc[3]}, 256, v{vWqSrc[1]}")
    a("v_and_b32 v29, 1, v24"); a("v_xor_b32 v29, v29, v26"); a("v_lshlrev_b32 v29, 4, v29"); a("v_lshl_add_u32 v29, v24, 11, v29"); a("v_lshl_add_u32 v29, v25, 6, v29")
    a("s_lshl_b32 s80, s79, 13"); a(f"s_add_u32 s80, s80, {LDS_ST}"); a("v_add_u32 v29, s80, v29")
    a("v_and_b32 v30, 1, v26"); a(f"v_lshl_add_u32 v{vWqRd[0]}, v30, 3, v29"); a("v_xor_b32 v30, 1, v30"); a(f"v_lshl_add_u32 v{vWqRd[1]}, v30, 3, v29")
    a(f"v_lshrrev_b32 v28, 2, v{l}"); a("v_mul_u32_u24 v28, 1280, v28"); a(f"v_lshrrev_b32 v29, 5, v{l}"); a("v_lshlrev_b32 v29, 1, v29"); a("v_xor_b32 v29, v29, v26"); a("v_lshl_add_u32 v28, v29, 4, v28")
    a("s_mul_i32 s80, s77, 160"); a("s_mul_i32 s81, s78, 80"); a("s_add_u32 s80, s80, s81"); a("s_mul_i32 s81, s79, 48"); a("s_add_u32 s80, s80, s81"); a("s_mul_i32 s80, s80, 1280")
    a(f"v_add_u32 v{vXsrc[0]}, s80, v28"); a(f"v_add_u32 v{vXsrc[1]}, 20480, v{vXsrc[0]}"); a(f"v_add_u32 v{vXsrc[2]}, 40960, v{vXsrc[0]}")
    a(f"s_lshl_b32 s80, s{sW}, 13"); a(f"s_add_u32 s80, s80, {LDS_XCH}"); a(f"v_add_u32 v{vXchW}, s80, v{vLin}")
    a(f"s_xor_b32 s80, s{sW}, 2"); a("s_lshl_b32 s80, s80, 13"); a(f"s_add_u32 s80, s80, {LDS_XCH}"); a(f"v_add_u32 v{vXchR}, s80, v{vLin}")
    a("v_mul_u32_u24 v28, 1280, v25"); a("v_lshl_add_u32 v28, v24, 6, v28"); a(f"v_lshl_add_u32 v{vWoSrc[0]}, v26, 4, v28")
    a("v_xor_b32 v29, 2, v26"); a("v_lshl_add_u32 v28, v29, 4, v28"); a(f"v_add_u32 v{vWoSrc[1]}, 5120, v28")
    a("s_lshl_b32 s80, s78, 6"); a("s_lshl_b32 s81, s5, 1"); a("s_add_u32 s80, s80, s81"); a("s_lshl_b32 s80, s80, 13")
    a("s_and_b32 s81, s3, 1"); a("s_lshl_b32 s81, s81, 12"); a("s_add_u32 s80, s80, s81")
    a(f"v_lshrrev_b32 v28, 5, v{l}"); a("v_lshlrev_b32 v28, 13, v28"); a(f"v_and_b32 v29, 31, v{l}"); a("v_lshl_add_u32 v28, v29, 7, v28"); a(f"v_add_u32 v{vTw}, s80, v28")
    a("s_bfe_u32 s80, s3, 0x10001"); a(f"s_mul_i32 s80, s80, {4*204800}"); a("s_mul_i32 s81, s5, 25600"); a("s_add_u32 s80, s80, s81"); a("s_lshl_b32 s81, s78, 14"); a("s_add_u32 s80, s80, s81")
    a(f"v_lshlrev_b32 v28, 7, v{l}"); a(f"v_add_u32 v{vTx}, s80, v28")
    a(f"v_add_u32 v{vTkv}, s{sG1}, v28")
    a("v_mov_b32 v28, 0x3f803f80")
    for i in range(4): a(f"v_accvgpr_write_b32 a{252+i}, v28")
    a("s_waitcnt lgkmcnt(0)")
    for (sr, lo, size) in ((sX, 64, 8*160*640*2), (sK, 66, 8*32*512*128*2), (sVv, 68, 8*32*512*128*2), (sWQ, 70, 640*4096*2), (sWO, 72, 640*4096*2), (sWS, 74, 1 << 28)):
        a(f"s_mov_b32 s{sr}, s{lo}"); a(f"s_and_b32 s{sr+1}, s{lo+1}, 0xffff"); a(f"s_mov_b32 s{sr+2}, {size}"); a(f"s_mov_b32 s{sr+3}, 0x20000")
    a("s_cmp_eq_u32 s78, 0"); a(f"s_cselect_b32 s{sKV}, s{sK}, s{sVv}"); a(f"s_cselect_b32 s{sKV+1}, s{sK+1}, s{sVv+1}"); a(f"s_mov_b32 s{sKV+2}, {8*32*512*128*2}"); a(f"s_mov_b32 s{sKV+3}, 0x20000")
    if STAMP: a("s_memtime s[82:83]"); a("s_memrealtime s[100:101]")
    a("s_cmp_eq_u32 s79, 1"); a("s_cbranch_scc1 K1_roleB")
    return L

def k2():
    L = []; a = L.append
    a("s_cmp_ge_u32 s2, 256"); a("s_cbranch_scc1 K2_end")
    a("s_load_dwordx2 s[4:5], s[0:1], 96"); a("s_load_dwordx2 s[6:7], s[0:1], 80")
    a("v_lshrrev_b32 v2, 6, v0"); a("v_and_b32 v1, 63, v0"); a("v_lshlrev_b32 v3, 4, v1")
    a("v_readfirstlane_b32 s3, v2"); a("v_add_u32 v4, 4096, v3")
    a("s_and_b32 s27, s2, 7"); a("s_lshr_b32 s28, s2, 3")
    a("s_lshr_b32 s24, s27, 2"); a("s_and_b32 s25, s27, 3"); a("s_lshl_b32 s25, s25, 2"); a("s_lshr_b32 s29, s28, 3"); a("s_add_u32 s25, s25, s29"); a("s_and_b32 s26, s28, 7")
    a("s_lshl_b32 s30, s24, 4"); a("s_add_u32 s30, s30, s25"); a("s_lshl_b32 s30, s30, 7"); a("s_lshl_b32 s31, s3, 5"); a("s_add_u32 s30, s30, s31"); a("s_mul_i32 s30, s30, 5120")
    a("s_lshl_b32 s32, s24, 3"); a("s_add_u32 s32, s32, s26"); a("s_lshl_b32 s32, s32, 7"); a("s_add_u32 s32, s32, s31"); a("s_mul_i32 s32, s32, 5120"); a(f"s_add_u32 s32, s32, {WS_WO}")
    for i in range(100): a(f"v_accvgpr_write_b32 a{i}, 0")
    a("s_waitcnt lgkmcnt(0)")
    a("s_mov_b32 s16, s4"); a("s_and_b32 s17, s5, 0xffff"); a("s_mov_b32 s18, 0x10000000"); a("s_mov_b32 s19, 0x20000")
    a("s_mov_b32 s20, s6"); a("s_and_b32 s21, s7, 0xffff"); a(f"s_mov_b32 s22, {8*160*1280*2}"); a("s_mov_b32 s23, 0x20000")
    p = Prog(pace=False)
    ST = 4
    def loads(ks):
        if ks >= 32: return
        s = ks % ST
        for (so, ro) in ((30, 0), (32, 20)):
            for t in range(5):
                r = 16 + s * 40 + ro + t * 4
                va = 3 if t < 4 else 4
                p.add(f"buffer_load_dwordx4 v[{r}:{r+3}], v{va}, s[16:19], s{so} offen" + (f" offset:{t*1024}" if 0 < t < 4 else "") + pol(POL_K2), 'vld', defs=V(r, 4), uses=V(va) + S(so), grp=ks)
            p.add(f"s_add_u32 s{so}, s{so}, 5120", 'salu', defs=S(so), uses=S(so))
    for ks in range(ST - 1): loads(ks)
    for ks in range(32):
        loads(ks + ST - 1)
        s = ks % ST
        for ct in range(5):
            for qt in range(5):
                w = 16 + s * 40 + 20 + ct * 4; o = 16 + s * 40 + qt * 4; c = (ct * 5 + qt) * 4
                op = p.add(f"v_mfma_f32_16x16x32_bf16 a[{c}:{c+3}], v[{w}:{w+3}], v[{o}:{o+3}], a[{c}:{c+3}]", 'mfma', defs=A(c, 4), uses=V(w, 4) + V(o, 4), cuses=A(c, 4))
                if s == 0 and ct == 0 and qt == 0: op.mark = 'g'
    p.add("s_mul_i32 s33, s3, 25600", 'salu', defs=S(33), uses=S(3))
    p.add("v_add_u32 v5, s33, v3", 'valu', defs=V(5), uses=V(3) + S(33))
    for t in range(25):
        tk = ('t', f"w{t}")
        p.add(f"ds_write_b128 v5, a[{t*4}:{t*4+3}] offset:{t*1024}", 'dsw', defs=[tk], uses=V(5) + A(t * 4, 4))
    p.add("s_barrier", 'bar', defs=T("red"), uses=[tk])
    log = []
    L += reroll(p.schedule(), "K2", 40, log)
    print("K2 windows", log, file=sys.stderr)
    a("v_and_b32 v6, 15, v1"); a("v_lshrrev_b32 v7, 4, v1")
    a("v_mul_u32_u24 v6, 2560, v6"); a("v_lshl_add_u32 v6, v7, 3, v6")
    a("s_mul_i32 s33, s25, 80"); a("s_mul_i32 s33, s33, 2560"); a("s_mul_i32 s34, s24, 1280"); a("s_add_u32 s33, s33, s34"); a("s_mul_i32 s34, s26, 160"); a("s_add_u32 s33, s33, s34")
    a("s_mov_b32 s35, s3")
    a("K2_red:")
    a("s_lshl_b32 s36, s35, 10"); a("v_add_u32 v8, s36, v3")
    a("ds_read_b128 v[16:19], v8"); a("ds_read_b128 v[20:23], v8 offset:25600"); a("ds_read_b128 v[24:27], v8 offset:51200")
    a("v_add_u32 v9, 25600, v8"); a("ds_read_b128 v[28:31], v9 offset:51200")
    a("s_mul_i32 s37, s35, 52"); a("s_lshr_b32 s37, s37, 8"); a("s_mul_i32 s38, s37, 5"); a("s_sub_u32 s38, s35, s38")
    a("s_mul_i32 s38, s38, 40960"); a("s_lshl_b32 s37, s37, 5"); a("s_add_u32 s38, s38, s37"); a("s_add_u32 s38, s38, s33")
    a("s_waitcnt lgkmcnt(0)")
    for i in range(4):
        a(f"v_add_f32 v{16+i}, v{16+i}, v{20+i}"); a(f"v_add_f32 v{24+i}, v{24+i}, v{28+i}")
    for i in range(4): a(f"v_add_f32 v{16+i}, v{16+i}, v{24+i}")
    a("v_cvt_pk_bf16_f32 v16, v16, v17"); a("v_cvt_pk_bf16_f32 v17, v18, v19")
    a("buffer_store_dwordx2 v[16:17], v6, s[20:23], s38 offen")
    a("s_add_u32 s35, s35, 4"); a("s_cmp_lt_u32 s35, 25"); a("s_cbranch_scc1 K2_red")
    a("K2_end:"); a("s_endpgm")
    return L

def kd(name, vg, sg, acc):
    return [f".amdhsa_kernel {name}", f"  .amdhsa_next_free_vgpr {vg}", f"  .amdhsa_next_free_sgpr {sg}", f"  .amdhsa_accum_offset {acc}",
            "  .amdhsa_group_segment_fixed_size 0", "  .amdhsa_kernarg_size 104", "  .amdhsa_user_sgpr_count 2",
            "  .amdhsa_user_sgpr_kernarg_segment_ptr 1", "  .amdhsa_system_sgpr_workgroup_id_x 1", ".end_amdhsa_kernel"]

def main(out):
    L = []
    L.append("; @launch kernel=attn_kernel grid=(256,1,1) block=(256,1,1) lds=163840")
    L.append("; @launch kernel=oproj_kernel grid=(256,1,1) block=(256,1,1) lds=102400")
    L += ['.amdgcn_target "amdgcn-amd-amdhsa--gfx950"', ".text", ".globl attn_kernel", ".p2align 8", ".type attn_kernel,@function", "attn_kernel:"]
    L += k1_prologue()
    L += K1Role('A').gen()
    L += ["s_endpgm", "K1_roleB:"]
    L += K1Role('B').gen()
    L += ["K1_end:", "s_endpgm"]
    L += [".globl oproj_kernel", ".p2align 8", ".type oproj_kernel,@function", "oproj_kernel:"]
    L += k2()
    L += ['.section .rodata,"a"', ".p2align 6"] + kd("attn_kernel", 512, 102, 256) + [".p2align 6"] + kd("oproj_kernel", 356, 64, 256)
    open(out, "w").write("\n".join(L) + "\n")
main(ARGS[0])
```
